```python
import torch

def _softmax(x, axis=-1):
    return torch.softmax(x, dim=axis)

def _gelu(x):
    return torch.nn.functional.gelu(x, approximate='tanh')

def _silu(x):
    return torch.nn.functional.silu(x)

def _sigmoid(x):
    return torch.sigmoid(x)

def _layernorm(x, axis=-1, eps=1e-05):
    m = x.mean(dim=axis, keepdim=True)
    v = x.var(dim=axis, keepdim=True, unbiased=False)
    return (x - m) / torch.sqrt(v + eps)

def _scatter_add(tgt, idx, src, axis=0):
    return tgt.clone().index_add_(axis, idx, src)

def _segment_sum(src, seg, n):
    out = torch.zeros((n,) + src.shape[1:], dtype=src.dtype)
    return out.index_add_(0, seg, src)

def _pad(x, pw):
    flat = tuple((v for pair in reversed(pw) for v in pair))
    return torch.nn.functional.pad(x, flat)
kernel_name = 'standalone__tensor_product_equiv_equiformer__graph'

def setup_inputs():

    _w = lambda a: (lambda t: t.to(torch.bfloat16) if t.is_floating_point() else t)(torch.as_tensor(a))
    N, deg, C, De = (10000, 32, 128, max(0, 1))
    E = N * deg
    src = (lambda lo, hi, *s: torch.randint(lo, hi, s))(0, N, E).to(torch.int64)
    dst = (lambda lo, hi, *s: torch.randint(lo, hi, s))(0, N, E).to(torch.int64)
    rvec = (lambda *s: torch.randn(*s, dtype=torch.bfloat16) * 0.05)(E, 3).to(float)
    rn = (torch.linalg.norm(rvec, dim=-1, keepdim=True) + 1e-06).to(float)
    rhat = (rvec / rn).to(float)
    eps = torch.zeros((3, 3, 3), dtype=float)
    eps[0, 1, 2] = eps[1, 2, 0] = eps[2, 0, 1] = 1.0
    eps[0, 2, 1] = eps[2, 1, 0] = eps[1, 0, 2] = -1.0
    return {'x': _w((lambda *s: torch.randn(*s, dtype=torch.bfloat16) * 0.4)(N, 4 * C).to(float)), 'rhat': _w(rhat), 'e_attr': _w((lambda *s: torch.randn(*s, dtype=torch.bfloat16) * 0.4)(E, De).to(float)), 'src': _w(src), 'dst': _w(dst), 'w_rad': _w((lambda *s: torch.randn(*s, dtype=torch.bfloat16) * 0.4)(De, 5 * C).to(float)), 'w_si0': _w((lambda *s: torch.randn(*s, dtype=torch.bfloat16) * 0.4)(2 * C, C).to(float)), 'w_si1': _w((lambda *s: torch.randn(*s, dtype=torch.bfloat16) * 0.05)(3 * C, C).to(float)), 'cg_eps': _w(eps)}

def reference(x, rhat, e_attr, src, dst, w_rad, w_si0, w_si1, cg_eps):
    N = x.shape[0]
    C = w_si0.shape[1]
    E = rhat.shape[0]
    x0 = x[:, :C].clone()
    x1 = x[:, C:].reshape(N, 3, C)
    R = (e_attr @ w_rad).reshape(E, 5, C)
    f0 = x0[src]
    f1 = x1[src]
    Y1 = rhat
    p00_0 = f0 * R[:, 0, :]
    p11_0 = torch.einsum('ejc,ej->ec', f1, Y1) * R[:, 1, :]
    p01_1 = torch.einsum('ec,ej->ejc', f0, Y1) * R[:, 2, :][:, None, :]
    p10_1 = f1 * R[:, 3, :][:, None, :]
    p11_1 = torch.einsum('ijk,ekc,ej->eic', cg_eps, f1, Y1) * R[:, 4, :][:, None, :]
    m0 = torch.concatenate([p00_0, p11_0], axis=-1) @ w_si0
    m1 = torch.einsum('ejp,pc->ejc', torch.concatenate([p01_1, p10_1, p11_1], axis=-1), w_si1)
    agg0 = _segment_sum(m0, dst, N)
    agg1 = _segment_sum(m1.reshape(E, 3 * C), dst, N).reshape(N, 3, C)
    gate = _sigmoid(agg0)
    out1 = agg1 * gate[:, None, :]
    return torch.concatenate([agg0, out1.reshape(N, 3 * C)], axis=-1)
```

```python
import sys

NAME = 'standalone__tensor_product_equiv_equiformer__graph'
K2 = NAME + '_kernel'
K1 = 'tp_bin_kernel'

NBIN = 250
NCH = 250
CHUNK = 1280
WS_REC = 0
WS_TBL = 0x400000
WS_WF = 0x480000
WS_DBG = 0x800000
OOB = 0x7F000000
XBYTES = 10240000


class Asm:
    def __init__(self):
        self.L = []
    def __call__(self, s):
        for line in s.split('\n'):
            line = line.strip()
            if line:
                self.L.append(('' if line.endswith(':') else '  ') + line)
    def text(self):
        return '\n'.join(self.L) + '\n'


def srd(a, d, base, nbytes, add=0):
    if add:
        a(f's_add_u32 s{d}, s{base}, {add}')
        a(f's_addc_u32 s{d+1}, s{base+1}, 0')
    else:
        a(f's_mov_b32 s{d}, s{base}')
        a(f's_mov_b32 s{d+1}, s{base+1}')
    a(f's_mov_b32 s{d+2}, {nbytes}')
    a(f's_mov_b32 s{d+3}, 0x20000')


class Stamp:
    def __init__(self, a, on, tmp, base):
        self.a, self.on, self.tmp, self.base, self.names = a, on, tmp, base, []
    def issue(self):
        if self.on: self.a(f's_memrealtime s[{self.tmp}:{self.tmp+1}]')
    def save(self, name):
        if self.on:
            self.a(f's_mov_b32 s{self.base+len(self.names)}, s{self.tmp}')
            self.names.append(name)
    def full(self, name):
        if self.on:
            self.issue()
            self.a('s_waitcnt lgkmcnt(0)')
            self.save(name)
    def dump(self, wsreg, off, wavereg, nwaves, srdreg, n=None):
        if not self.on: return
        a = self.a
        n = len(self.names) if n is None else n
        a(f's_add_u32 s{srdreg}, s{wsreg}, {off}\ns_addc_u32 s{srdreg+1}, s{wsreg+1}, 0')
        a(f's_mov_b32 s{srdreg+2}, {288*8*128}\ns_mov_b32 s{srdreg+3}, 0x20000')
        a('s_mov_b64 exec, -1')
        a('v_mov_b32 v2, 0')
        for i in range(n):
            a(f'v_writelane_b32 v2, s{self.base+i}, {i}')
        a(f's_mul_i32 s{self.tmp}, s2, {nwaves}\ns_add_u32 s{self.tmp}, s{self.tmp}, s{wavereg}\ns_lshl_b32 s{self.tmp}, s{self.tmp}, 7')
        a('v_and_b32 v3, 63, v0\nv_lshlrev_b32 v3, 2, v3')
        a('s_mov_b64 exec, 0xffffffff')
        a(f'buffer_store_dword v2, v3, s[{srdreg}:{srdreg+3}], s{self.tmp} offen')
        a('s_waitcnt vmcnt(0)')

WS_ST1 = 0x900000
WS_ST2 = 0xA00000

def gen_k1(a, warm=True, stamp=False):
    st = Stamp(a, stamp, 62, 64)
    HIST = 0
    OFF = 1024
    a(f'.globl {K1}\n.p2align 8\n.type {K1},@function\n{K1}:')
    a(f's_cmp_ge_u32 s2, {NCH}\ns_cbranch_scc1 K1_END')
    a('s_load_dwordx4 s[4:7], s[0:1], 8')
    a('s_load_dwordx4 s[8:11], s[0:1], 24')
    a('s_load_dwordx2 s[12:13], s[0:1], 88')
    st.full('start')
    a('v_lshrrev_b32 v1, 6, v0')
    a('s_nop 0')
    a('v_readfirstlane_b32 s3, v1')
    a('s_cmp_eq_u32 s3, 5\ns_cbranch_scc1 K1_HELPER')
    a(f's_mul_i32 s14, s2, {CHUNK}')
    a('v_lshlrev_b32 v1, 2, v0')
    a('v_add_u32 v1, s14, v1')
    a('v_lshlrev_b32 v2, 2, v1')
    a('v_mul_u32_u24 v3, 6, v1')
    a('v_lshlrev_b32 v40, 1, v1')
    a('s_waitcnt lgkmcnt(0)')
    srd(a, 16, 10, 1280000)
    srd(a, 20, 8, 1280000)
    srd(a, 24, 4, 1920000)
    srd(a, 28, 6, 640000)
    a('buffer_load_dwordx4 v[4:7], v2, s[16:19], 0 offen')
    a('buffer_load_dwordx4 v[8:11], v2, s[20:23], 0 offen')
    a('buffer_load_dwordx4 v[12:15], v3, s[24:27], 0 offen')
    a('buffer_load_dwordx2 v[16:17], v3, s[24:27], 0 offen offset:16')
    a('buffer_load_dwordx2 v[18:19], v40, s[28:31], 0 offen')
    srd(a, 32, 12, 320000 * 12, WS_REC)
    srd(a, 36, 12, NBIN * 1024, WS_TBL)
    a('s_cmp_lg_u32 s3, 0\ns_cbranch_scc1 K1_NOZ')
    a('v_mov_b32 v44, 0\nv_mov_b32 v45, 0\nv_mov_b32 v46, 0\nv_mov_b32 v47, 0')
    a('v_lshlrev_b32 v41, 4, v0')
    a(f'ds_write_b128 v41, v[44:47] offset:{HIST}')
    a('s_waitcnt lgkmcnt(0)')
    a('K1_NOZ:')
    a('s_barrier')
    a('s_mov_b32 s40, -40')
    a('v_mov_b32 v42, 1')
    a('s_waitcnt vmcnt(4)')
    st.full('dst_arr')
    for i in range(4):
        a(f'v_mul_u32_u24 v{48+i}, 52429, v{4+i}')
    for i in range(4):
        a(f'v_lshrrev_b32 v{48+i}, 21, v{48+i}')
    for i in range(4):
        a(f'v_mad_i32_i24 v{52+i}, v{48+i}, s40, v{4+i}')
        a(f'v_lshlrev_b32 v{48+i}, 2, v{48+i}')
    for i in range(4):
        a(f'ds_add_rtn_u32 v{56+i}, v{48+i}, v42 offset:{HIST}')
    for i in range(4):
        a(f'v_mul_u32_u24 v{60+i}, 52, v{52+i}')
    for i in range(4):
        a(f'v_lshrrev_b32 v{60+i}, 8, v{60+i}')
    for i in range(4):
        a(f'v_mad_u32_u24 v{52+i}, v{60+i}, 3, v{52+i}')
    a('s_waitcnt vmcnt(3)')
    for i in range(4):
        a(f'v_lshlrev_b32 v{60+i}, 10, v{8+i}')
        a(f'v_lshl_or_b32 v{20+4*i}, v{52+i}, 24, v{60+i}')
    a('s_waitcnt vmcnt(0)')
    a('v_lshlrev_b32 v60, 16, v18\nv_and_b32 v61, 0xffff0000, v18')
    a('v_lshlrev_b32 v62, 16, v19\nv_and_b32 v63, 0xffff0000, v19')
    ysrc = [[(12, 0), (12, 1), (13, 0)], [(13, 1), (14, 0), (14, 1)],
            [(15, 0), (15, 1), (16, 0)], [(16, 1), (17, 0), (17, 1)]]
    for i in range(4):
        for k in range(3):
            r, hi = ysrc[i][k]
            if hi:
                a(f'v_and_b32 v{64+k}, 0xffff0000, v{r}')
            else:
                a(f'v_lshlrev_b32 v{64+k}, 16, v{r}')
        for k in range(3):
            a(f'v_mul_f32 v{64+k}, v{60+i}, v{64+k}')
        a(f'v_cvt_pk_bf16_f32 v{21+4*i}, v{60+i}, v64')
        a(f'v_cvt_pk_bf16_f32 v{22+4*i}, v65, v66')
    a('s_waitcnt lgkmcnt(0)')
    st.full('rec_ready')
    a('s_barrier')
    a('v_and_b32 v41, 63, v0')
    a('v_lshlrev_b32 v43, 4, v41')
    a(f'ds_read_b128 v[4:7], v43 offset:{HIST}')
    a('s_waitcnt lgkmcnt(0)')
    a('v_add_u32 v8, v4, v5')
    a('v_add_u32 v9, v8, v6')
    a('v_add_u32 v10, v9, v7')
    a('v_mov_b32 v11, v10')
    for sh in (1, 2, 4, 8):
        a('s_nop 1')
        a(f'v_add_u32_dpp v11, v11, v11 row_shr:{sh} row_mask:0xf bank_mask:0xf')
    a('s_nop 1')
    a('v_add_u32_dpp v11, v11, v11 row_bcast:15 row_mask:0xa bank_mask:0xf')
    a('s_nop 1')
    a('v_add_u32_dpp v11, v11, v11 row_bcast:31 row_mask:0xc bank_mask:0xf')
    a('v_sub_u32 v12, v11, v10')
    a('v_add_u32 v13, v12, v4')
    a('v_add_u32 v14, v12, v8')
    a('v_add_u32 v15, v12, v9')
    a(f'ds_write_b128 v43, v[12:15] offset:{OFF}')
    for i in range(4):
        a(f'ds_read_b32 v{60+i}, v{48+i} offset:{OFF}')
    a('s_cmp_lg_u32 s3, 0\ns_cbranch_scc1 K1_NOT')
    a('s_lshl_b32 s15, s2, 2')
    a('v_lshlrev_b32 v44, 12, v41')
    a('v_add_u32 v44, s15, v44')
    for i in range(4):
        a(f'v_lshl_or_b32 v{8+i}, v{4+i}, 16, v{12+i}')
    for i in range(4):
        a(f'buffer_store_dword v{8+i}, v44, s[36:39], 0 offen offset:{1024*i}')
    a('K1_NOT:')
    a('s_waitcnt lgkmcnt(0)')
    for i in range(4):
        a(f'v_add3_u32 v{60+i}, v{60+i}, v{56+i}, s14')
        a(f'v_mul_u32_u24 v{60+i}, 12, v{60+i}')
    for i in range(4):
        a(f'buffer_store_dwordx3 v[{20+4*i}:{22+4*i}], v{60+i}, s[32:35], 0 offen')
    st.full('st_issued')
    a('s_waitcnt vmcnt(0)')
    st.full('end')
    st.dump(12, WS_ST1, 3, 8, 44)
    a('s_endpgm')
    a('K1_HELPER:')
    a('s_load_dwordx2 s[16:17], s[0:1], 0')
    a('s_load_dwordx2 s[18:19], s[0:1], 40')
    a('s_load_dwordx4 s[20:23], s[0:1], 48')
    a('v_and_b32 v1, 63, v0')
    a('s_mul_i32 s24, s2, 3277\ns_lshr_b32 s24, s24, 16')
    a('s_mul_i32 s25, s24, 20\ns_sub_u32 s25, s2, s25')
    a('s_lshr_b32 s26, s25, 2\ns_and_b32 s27, s25, 3')
    a('s_waitcnt lgkmcnt(0)')
    srd(a, 44, 16, XBYTES)
    srd(a, 48, 18, 1280)
    a('s_cmp_eq_u32 s26, 0\ns_cselect_b32 s28, 1, 0')
    a('s_cmp_eq_u32 s26, 3\ns_cselect_b32 s28, 1, s28')
    a('s_cmp_eq_u32 s28, 1')
    a('s_cselect_b32 s52, s20, s22\ns_cselect_b32 s53, s21, s23')
    a('s_mov_b32 s54, 98304')
    a('s_cselect_b32 s54, 65536, s54')
    a('s_mov_b32 s55, 0x20000')
    a('s_lshr_b32 s29, s26, 1')
    a('s_mov_b32 s30, 0')
    a('s_cmp_eq_u32 s26, 1\ns_cselect_b32 s30, 2, s30')
    a('s_cmp_eq_u32 s26, 2\ns_cselect_b32 s30, 3, s30')
    a('s_cmp_eq_u32 s26, 3\ns_cselect_b32 s30, 1, s30')
    a('s_cmp_eq_u32 s26, 4\ns_cselect_b32 s30, 4, s30')
    srd(a, 56, 12, 160 * 1024, WS_WF)
    a('v_lshrrev_b32 v2, 4, v1\nv_and_b32 v3, 15, v1')
    a('v_lshrrev_b32 v4, 1, v2\nv_and_b32 v5, 1, v2')
    a('v_lshlrev_b32 v4, 4, v4\nv_lshl_add_u32 v4, v5, 2, v4')
    a('s_lshl_b32 s31, s27, 5')
    a('v_add_u32 v4, s31, v4')
    a('s_lshl_b32 s31, s30, 8')
    a('v_lshl_add_u32 v5, v4, 1, s31')
    a('s_lshl_b32 s31, s29, 15')
    a('s_lshl_b32 s33, s24, 5\ns_add_u32 s31, s31, s33')
    a('v_lshlrev_b32 v6, 8, v4')
    a('v_lshl_add_u32 v6, v3, 1, v6')
    a('v_add_u32 v6, s31, v6')
    a('s_cmp_ge_u32 s2, 160\ns_cbranch_scc1 K1_H1')
    a('buffer_load_dwordx2 v[8:9], v5, s[48:51], 0 offen')
    a('buffer_load_dwordx2 v[10:11], v5, s[48:51], 0 offen offset:16')
    for j in range(8):
        a(f'buffer_load_ushort v{12+j}, v6, s[52:55], 0 offen offset:{(j&3)*256 + (j>>2)*2048}')
    a('K1_H1:')
    a('s_barrier')
    nwarm = 0
    if warm:
        a('v_lshlrev_b32 v7, 4, v1')
        a('s_mul_i32 s34, s2, 40960')
        for b in range(10):
            for q in range(4):
                a(f'buffer_load_dwordx4 v[{24+4*q}:{27+4*q}], v7, s[44:47], s34 offen offset:{1024*q}')
            if b < 9:
                a('s_add_u32 s34, s34, 4096')
        nwarm = 40
    a('s_barrier')
    a('s_cmp_ge_u32 s2, 160\ns_cbranch_scc1 K1_H2')
    a(f's_waitcnt vmcnt({nwarm})')
    for j in range(8):
        r = 8 + (j >> 1)
        if j & 1:
            a(f'v_and_b32 v{40+j}, 0xffff0000, v{r}')
        else:
            a(f'v_lshlrev_b32 v{40+j}, 16, v{r}')
    for j in range(8):
        a(f'v_lshlrev_b32 v{12+j}, 16, v{12+j}')
    for j in range(8):
        a(f'v_mul_f32 v{40+j}, v{40+j}, v{12+j}')
    for j in range(4):
        a(f'v_cvt_pk_bf16_f32 v{48+j}, v{40+2*j}, v{41+2*j}')
    a('s_lshl_b32 s35, s2, 10')
    a('v_lshlrev_b32 v7, 4, v1')
    a('buffer_store_dwordx4 v[48:51], v7, s[56:59], s35 offen')
    a('K1_H2:')
    a('s_waitcnt vmcnt(0)')
    if stamp:
        st.names = ['start']
        st.full('hend')
        st.dump(12, WS_ST1, 3, 8, 44)
    a('K1_END:')
    a('s_endpgm')


def descriptor(name, nv, ns):
    acc = (nv + 3) // 4 * 4
    return f'''.amdhsa_kernel {name}
  .amdhsa_next_free_vgpr {nv}
  .amdhsa_next_free_sgpr {ns}
  .amdhsa_accum_offset {acc}
  .amdhsa_group_segment_fixed_size 0
  .amdhsa_kernarg_size 96
  .amdhsa_user_sgpr_count 2
  .amdhsa_user_sgpr_kernarg_segment_ptr 1
  .amdhsa_system_sgpr_workgroup_id_x 1
.end_amdhsa_kernel
'''


def header():
    src = open('cdna_kernels/' + NAME + '.s.ref').read().split('\n')
    out = []
    for l in src:
        if not l.startswith(';'):
            break
        if '@launch' in l and 'grid=(20000' in l:
            continue
        out.append(l)
    return out


class Cfg:
    def __init__(self, **kw):
        self.R = 4
        self.B = 2
        self.NG = 4
        self.warm = True
        self.dbg = None
        self.aux = ''
        self.stamp = False
        self.dbgstamp = False
        self.calib = 0
        self.abl = ''
        self.twice = False
        self.order = 0
        self.newk1 = False
        self.k1sc = 'sc0 sc1'
        self.xcd = False
        self.pf = -1
        for k, v in kw.items():
            assert hasattr(self, k), k
            setattr(self, k, v)
        self.S0 = self.B + self.NG
        assert self.S0 % 2 == 0 and self.S0 > self.R and 24 % self.NG == 0 and 24 // self.NG <= 6
        R = self.R
        self.COEF = 0
        self.CNT = self.COEF + 16384
        self.ZERO = self.CNT + 256
        self.FLAG = self.ZERO + 16
        self.OFF = self.CNT + 512
        self.TBLW = (16 + R) * 64
        self.TBL = self.OFF + 256
        self.F = self.TBL + 8 * self.TBLW
        self.RING = self.F + 49152
        self.LDS = self.RING + 8 * R * 2048
        assert self.F % 256 == 0
        assert self.LDS <= 163840, self.LDS


V_LANE, V_CHUNK, V_TRL0, V_TRL1, V_TAB0, V_TABP, V_COEF0, V_COEFP, V_MASK = 1, 2, 3, 4, 5, 6, 7, 8, 9
V_ENT, V_A0, V_A1, V_R0, V_R1, V_T, V_CA, V_FW, V_FR = 10, 12, 13, 14, 15, 16, 17, 18, 19
SET = (20, 32)
G2B = 44
AGG = 68
OUT = 100
WREG = 148
NEGW = 228
S_W, S_C0, S_CN, S_J0, S_MODE, S_MORE = 3, 16, 17, 18, 19, 20
S_N, S_SOFF, S_P, S_Q, S_RB, S_RE, S_ZERO, S_SIG, S_REM, S_FIRST = 21, 22, 23, 24, 25, 26, 27, 28, 29, 44
SRD_X, SRD_WS, SRD_OUT = 4, 8, 12


def g2_tasks(p):
    g, half = p >> 1, p & 1
    lst = []
    sign = {(1, 2): 1, (2, 0): 1, (0, 1): 1, (2, 1): -1, (1, 0): -1, (0, 2): -1}
    for nt in range(3):
        for pp in range(4):
            if g == 0:
                mat, neg, o = (0, False, 0) if pp == 0 else (1, False, pp)
            else:
                k = g - 1
                if pp == 0:
                    mat, neg, o = 2, False, 1 + k
                elif pp == 1 + k:
                    mat, neg, o = 3, False, 0
                else:
                    j = pp - 1
                    mat, neg, o = 4, sign[(j, k)] < 0, 1 + (3 - j - k)
            for T in range(2):
                Tp = 2 * half + T
                wreg = (NEGW + 4 * Tp) if neg else (WREG + 4 * (mat * 4 + Tp))
                foff = (p & 1) * 24576 + pp * 6144 + T * 3072 + nt * 256
                lst.append((foff, wreg, OUT + (o * 3 + nt) * 4))
    return lst


def gen_k2(a, c):
    R, B, NG, S0 = c.R, c.B, c.NG, c.S0
    GP = 24 // NG
    stp = Stamp(a, c.stamp, 50, 52)
    a(f'.globl {K2}\n.p2align 8\n.type {K2},@function\n{K2}:')
    a(f's_cmp_ge_u32 s2, {NBIN}\ns_cbranch_scc1 K2_END')
    a('s_load_dwordx2 s[30:31], s[0:1], 0')
    a('s_load_dwordx2 s[32:33], s[0:1], 72')
    a('s_load_dwordx2 s[34:35], s[0:1], 88')
    a(f'v_and_b32 v{V_LANE}, 63, v0')
    a('v_lshrrev_b32 v60, 6, v0')
    a('v_lshrrev_b32 v61, 1, v0')
    a(f'v_readfirstlane_b32 s{S_W}, v60')
    a(f's_mov_b32 s{S_C0}, 0\ns_mov_b32 s{S_CN}, {NCH}\ns_mov_b32 s{S_J0}, 0\ns_mov_b32 s{S_MODE}, 0')
    a(f's_mov_b32 s{S_FIRST}, 1')
    if c.twice: a('s_mov_b32 s49, 0')
    if c.xcd:
        a('s_and_b32 s36, s2, 7\ns_lshr_b32 s37, s2, 3\ns_mul_i32 s38, s36, 31\ns_min_u32 s36, s36, 2')
        a('s_add_u32 s38, s38, s36\ns_add_u32 s2, s38, s37')
    if c.newk1:
        a('s_lshl_b32 s36, s2, 2')
        a(f's_add_u32 s36, s36, {WS_TBL}')
        a('v_lshlrev_b32 v62, 10, v61')
    else:
        a('s_lshl_b32 s36, s2, 10')
        a(f's_add_u32 s36, s36, {WS_TBL}')
        a('v_lshlrev_b32 v62, 2, v61')
    stp.issue()
    a('s_waitcnt lgkmcnt(0)')
    stp.save('start')
    srd(a, SRD_WS, 34, WS_WF + 160 * 1024)
    srd(a, SRD_X, 30, XBYTES)
    srd(a, SRD_OUT, 32, XBYTES)
    a(f'buffer_load_dword v63, v62, s[{SRD_WS}:{SRD_WS+3}], s36 offen')
    a(f's_mul_i32 s37, s{S_W}, 20480\ns_add_u32 s37, s37, {WS_WF}')
    a(f'v_lshlrev_b32 v64, 4, v{V_LANE}')
    for i in range(20):
        a(f'buffer_load_dwordx4 v[{WREG+4*i}:{WREG+4*i+3}], v64, s[{SRD_WS}:{SRD_WS+3}], s37 offen offset:{1024*(i&3)}')
        if i & 3 == 3 and i < 19:
            a('s_add_u32 s37, s37, 4096')
    l = V_LANE
    a(f'v_lshrrev_b32 v65, 3, v{l}')
    a(f'v_and_b32 v66, 7, v{l}')
    a(f'v_lshrrev_b32 v67, 4, v{l}\nv_and_b32 v67, 1, v67')
    a('v_lshlrev_b32 v68, 2, v67\nv_xor_b32 v68, v68, v66')
    a(f'v_lshlrev_b32 v{V_CHUNK}, 4, v68')
    a(f'v_bfe_u32 v68, v{l}, 2, 2')
    a(f'v_and_b32 v69, 3, v{l}')
    a(f'v_lshrrev_b32 v70, 5, v{l}')
    a('v_lshl_add_u32 v71, v70, 3, v68')
    a('v_lshlrev_b32 v71, 7, v71')
    a('v_lshrrev_b32 v72, 1, v69')
    a('v_lshl_add_u32 v72, v67, 1, v72')
    a('v_lshrrev_b32 v73, 1, v68\nv_lshlrev_b32 v73, 2, v73')
    a('v_xor_b32 v72, v72, v73')
    a('v_lshl_add_u32 v71, v72, 4, v71')
    a('v_and_b32 v73, 1, v69')
    a(f'v_lshl_add_u32 v{V_TRL0}, v73, 3, v71')
    a(f'v_xor_b32 v{V_TRL1}, 64, v{V_TRL0}')
    a(f's_mul_i32 s38, s{S_W}, {c.TBLW}\ns_add_u32 s38, s38, {c.TBL}')
    a(f'v_lshl_add_u32 v{V_TAB0}, v65, 3, s38')
    a(f's_lshl_b32 s39, s{S_W}, 11\ns_add_u32 s39, s39, {c.COEF}')
    a('v_and_b32 v72, 3, v65')
    a('v_lshlrev_b32 v73, 6, v70')
    a('v_lshl_add_u32 v73, v72, 4, v73')
    a(f'v_add_u32 v{V_COEF0}, s39, v73')
    a(f's_mul_i32 s39, s{S_W}, 80\ns_add_u32 s39, s39, {c.F}')
    a('v_mul_u32_u24 v72, 6144, v72')
    a('v_mul_u32_u24 v73, 768, v70')
    a('v_add3_u32 v72, v72, v73, s39')
    a(f'v_lshl_add_u32 v{V_FW}, v66, 4, v72')
    a(f'v_lshrrev_b32 v72, 4, v{l}\nv_mul_u32_u24 v72, 768, v72')
    a(f'v_and_b32 v73, 15, v{l}')
    a('v_lshl_add_u32 v72, v73, 4, v72')
    a(f'v_add_u32 v{V_FR}, {c.F}, v72')
    a(f's_mul_i32 s{S_RB}, s{S_W}, {R*2048}')
    a(f's_add_u32 s{S_RB}, s{S_RB}, {c.RING}')
    a(f's_add_u32 s{S_RE}, s{S_RB}, {R*2048}')
    a(f's_mov_b32 s{S_ZERO}, {c.ZERO}')
    a('s_mov_b32 s42, 0x1f1f1f1f\ns_mov_b32 s43, 0x1f1f1f1f')
    if c.pf >= 0:
        a(f's_lshr_b32 s45, s2, 3\ns_mul_i32 s45, s45, 320\ns_lshl_b32 s46, s{S_W}, 6\ns_add_u32 s45, s45, s46')
        a(f's_cmp_lt_u32 s{S_W}, 5\ns_cselect_b32 s45, s45, 0x100000')
        a(f'v_add_u32 v244, s45, v{V_LANE}')
        a('v_lshlrev_b32 v244, 10, v244')
        a(f'v_add_u32 v244, 128, v244')
    for i in range(0, 48, 2):
        a(f'v_mov_b64 v[{OUT+i}:{OUT+i+1}], 0')
    a('K2_ROUND:')
    a('v_mov_b64 v[68:69], 0\nv_mov_b64 v[70:71], 0')
    a(f'v_mov_b32 v72, {OOB}\nv_mov_b32 v73, {OOB}\nv_mov_b32 v74, {OOB}\nv_mov_b32 v75, {OOB}')
    a('v_lshlrev_b32 v76, 4, v0')
    a(f'ds_write_b128 v76, v[68:71] offset:{c.COEF}')
    a(f'ds_write_b128 v76, v[68:71] offset:{c.COEF+8192}')
    a(f'ds_write_b128 v76, v[72:75] offset:{c.TBL}')
    rest = 8 * c.TBLW - 8192
    assert rest > 0 and rest % 16 == 0
    a(f'v_cmp_gt_u32 vcc, {rest//16}, v0')
    a('s_and_saveexec_b64 s[40:41], vcc')
    a('s_cbranch_execz K2_I1')
    a(f'ds_write_b128 v76, v[72:75] offset:{c.TBL+8192}')
    a('K2_I1:')
    a('s_mov_b64 exec, s[40:41]')
    a('v_cmp_gt_u32 vcc, 32, v0')
    a('s_and_saveexec_b64 s[40:41], vcc')
    a('s_cbranch_execz K2_I2')
    a(f'ds_write_b128 v76, v[68:71] offset:{c.CNT}')
    a('K2_I2:')
    a('s_mov_b64 exec, s[40:41]')
    a('s_waitcnt lgkmcnt(0)')
    a('s_barrier')
    a(f's_cmp_eq_u32 s{S_FIRST}, 1\ns_cbranch_scc1 K2_W20')
    a('s_waitcnt vmcnt(0)')
    a('K2_W20:')
    a('s_waitcnt vmcnt(20)')
    stp.full('tbl_arr')
    a(f's_mov_b32 s{S_FIRST}, 0')
    a('v_lshrrev_b32 v61, 1, v0')
    a('v_and_b32 v62, 1, v0')
    a(f'v_add_u32 v64, s{S_C0}, v61')
    a(f'v_cmp_gt_u32 vcc, s{S_CN}, v61')
    a(f'v_cmp_gt_u32 s[40:41], {NCH if NCH <= 64 else "s45"}, v64' if False else f's_mov_b32 s45, {NCH}')
    a('v_cmp_gt_u32 s[40:41], s45, v64')
    a('s_nop 1')
    a('s_and_b64 vcc, vcc, s[40:41]')
    a('v_cndmask_b32 v63, 0, v63, vcc')
    a('v_lshrrev_b32 v65, 16, v63')
    a('v_and_b32 v66, 0xffff, v63')
    a(f'v_subrev_u32 v67, s{S_J0}, v65')
    a('v_max_i32 v67, 0, v67')
    a('v_cmp_lt_u32 vcc, 20, v67')
    a('s_and_saveexec_b64 s[40:41], vcc')
    a('s_cbranch_execz K2_NOMORE')
    a('v_mov_b32 v68, 1')
    a(f'v_mov_b32 v69, {c.FLAG}')
    a('ds_write_b32 v69, v68')
    a('K2_NOMORE:')
    a('s_mov_b64 exec, s[40:41]')
    a('v_min_u32 v67, 20, v67')
    a('v_sub_u32 v67, v67, v62')
    a('v_add_u32 v67, 1, v67')
    a('v_lshrrev_b32 v67, 1, v67')
    a(f'v_mul_u32_u24 v64, {CHUNK}, v64')
    a(f'v_add3_u32 v64, v64, v66, s{S_J0}')
    a('v_add_u32 v64, v64, v62')
    a('v_mul_u32_u24 v64, 12, v64')
    MT = 67
    NREC = 10
    def rec(i): return 20 + 4 * i
    for i in range(NREC):
        a(f'v_cmp_lt_u32 vcc, {i}, v{MT}')
        a('s_and_b64 exec, exec, vcc')
        a('s_cbranch_execz K2_LD_DONE')
        a(f'buffer_load_dwordx3 v[{rec(i)}:{rec(i)+2}], v64, s[{SRD_WS}:{SRD_WS+3}], 0 offen offset:{24*i}')
    a('K2_LD_DONE:')
    a('s_mov_b64 exec, -1')
    a('v_mov_b32 v68, 1')
    a('s_waitcnt vmcnt(0)')
    stp.full('rec_arr')
    for i in range(NREC):
        a(f'v_cmp_lt_u32 vcc, {i}, v{MT}')
        a('s_and_b64 exec, exec, vcc')
        a('s_cbranch_execz K2_RK_DONE')
        a(f'v_lshrrev_b32 v{70+i}, 24, v{rec(i)}')
        a(f'v_lshlrev_b32 v{70+i}, 2, v{70+i}')
        a(f'ds_add_rtn_u32 v{rec(i)+3}, v{70+i}, v68 offset:{c.CNT}')
    a('K2_RK_DONE:')
    a('s_mov_b64 exec, -1')
    for i in range(16):
        a(f'v_xor_b32 v{NEGW+i}, 0x80008000, v{WREG+64+i}')
    a('s_waitcnt lgkmcnt(0)')
    a('s_barrier')
    stp.full('rank_bar')
    a(f'v_lshlrev_b32 v60, 2, v{V_LANE}')
    a(f'ds_read_b32 v61, v60 offset:{c.CNT}')
    a(f'v_mov_b32 v62, {c.FLAG}')
    a('ds_read_b32 v63, v62')
    a('s_waitcnt lgkmcnt(0)')
    a('v_add_u32 v61, 7, v61\nv_and_b32 v61, -8, v61')
    a('v_mov_b32 v64, v61')
    a('s_nop 1')
    a('v_add_u32_dpp v64, v64, v64 row_shr:1 row_mask:0xf bank_mask:0xf')
    a('s_nop 1')
    a('v_add_u32_dpp v64, v64, v64 row_shr:2 row_mask:0xf bank_mask:0xf')
    a('s_nop 1')
    a('v_add_u32_dpp v64, v64, v64 row_shr:4 row_mask:0xf bank_mask:0xa')
    a(f'v_readfirstlane_b32 s{S_MORE}, v63')
    a('s_mov_b32 s45, 256')
    a('v_cmp_lt_u32 vcc, s45, v64')
    a(f's_cmp_eq_u32 s{S_MODE}, 0\ns_cbranch_scc0 K2_GO')
    a(f's_cmp_lg_u32 s{S_MORE}, 0\ns_cbranch_scc1 K2_FALLBACK')
    a('s_cmp_lg_u64 vcc, 0\ns_cbranch_scc1 K2_FALLBACK')
    a('K2_GO:')
    a('v_sub_u32 v65, v64, v61')
    a(f'v_lshrrev_b32 v66, 3, v{V_LANE}')
    a('v_lshl_add_u32 v69, v66, 8, v65')
    a(f'ds_write_b32 v60, v69 offset:{c.OFF}')
    a('v_lshl_or_b32 v65, v61, 16, v65')
    a(f's_lshl_b32 s45, s{S_W}, 3')
    a(f'v_and_b32 v66, 7, v{V_LANE}')
    a('v_add_lshl_u32 v66, v66, s45, 2')
    a('ds_bpermute_b32 v69, v66, v65')
    a('s_add_u32 s45, s45, 7')
    a('s_nop 3')
    a(f'v_readlane_b32 s46, v64, s45')
    for i in range(NREC):
        a(f'v_cmp_lt_u32 vcc, {i}, v{MT}')
        a('s_and_b64 exec, exec, vcc')
        a('s_cbranch_execz K2_OF_DONE')
        a(f'ds_read_b32 v{80+i}, v{70+i} offset:{c.OFF}')
    a('K2_OF_DONE:')
    a('s_mov_b64 exec, -1')
    a('s_add_u32 s46, s46, 31\ns_lshr_b32 s46, s46, 5\ns_lshl_b32 s46, s46, 1')
    a(f's_max_u32 s{S_N}, s46, {S0}')
    a('s_waitcnt lgkmcnt(0)')
    a('v_and_b32 v61, 0xffff, v69\nv_lshrrev_b32 v62, 16, v69')
    a('v_add_u32 v62, v62, v61')
    a('v_lshrrev_b32 v61, 3, v61\nv_lshrrev_b32 v62, 3, v62')
    a(f'v_lshrrev_b32 v63, 5, v{V_LANE}')
    a('v_sub_u32 v63, 1, v63')
    a('v_add_u32 v61, v61, v63\nv_add_u32 v62, v62, v63')
    a('v_lshrrev_b32 v61, 1, v61\nv_lshrrev_b32 v62, 1, v62')
    a('v_lshlrev_b32 v61, v61, 1\nv_lshlrev_b32 v62, v62, 1')
    a(f'v_sub_u32 v{V_MASK}, v62, v61')
    for i in range(NREC):
        r = rec(i)
        a(f'v_cmp_lt_u32 vcc, {i}, v{MT}')
        a('s_and_b64 exec, exec, vcc')
        a('s_cbranch_execz K2_SC_DONE')
        a(f'v_add_u32 v60, v{80+i}, v{r+3}')
        a('v_and_b32 v61, 7, v60')
        a('v_lshrrev_b32 v62, 3, v60')
        a('v_lshlrev_b32 v63, 6, v62')
        a('v_lshl_add_u32 v63, v61, 1, v63')
        a(f'ds_write_b16 v63, v{r+1} offset:{c.COEF}')
        a(f'ds_write_b16_d16_hi v63, v{r+1} offset:{c.COEF+16}')
        a(f'ds_write_b16 v63, v{r+2} offset:{c.COEF+32}')
        a(f'ds_write_b16_d16_hi v63, v{r+2} offset:{c.COEF+48}')
        a('v_bfe_u32 v64, v60, 4, 4')
        a(f'v_lshrrev_b32 v65, 5, v{70+i}')
        a(f'v_mul_u32_u24 v65, {c.TBLW}, v65')
        a('v_lshl_add_u32 v65, v64, 6, v65')
        a('v_lshl_add_u32 v65, v61, 3, v65')
        a('v_and_b32 v62, 1, v62')
        a('v_lshl_add_u32 v65, v62, 2, v65')
        a(f'v_and_b32 v66, 0xffffff, v{r}')
        a(f'ds_write_b32 v65, v66 offset:{c.TBL}')
    a('K2_SC_DONE:')
    a('s_mov_b64 exec, -1')
    for i in range(0, 32, 2):
        a(f'v_mov_b64 v[{AGG+i}:{AGG+i+1}], 0')
    a('s_waitcnt lgkmcnt(0)')
    a('s_barrier')
    stp.full('scat_bar')
    a(f's_mul_i32 s38, s{S_W}, {c.TBLW}\ns_add_u32 s38, s38, {c.TBL}')
    a(f's_lshl_b32 s45, s{S_N}, 6\ns_add_u32 s47, s38, s45')
    a(f'v_lshl_add_u32 v60, v{V_LANE}, 3, s38')
    a(f'v_lshl_add_u32 v61, v{V_LANE}, 3, s47')
    a(f's_bfm_b64 exec, {R*8}, 0')
    a('ds_read_b64 v[62:63], v60')
    a('s_waitcnt lgkmcnt(0)')
    a('v_add_u32 v62, 128, v62\nv_add_u32 v63, 128, v63')
    a('ds_write_b64 v61, v[62:63]')
    a('s_mov_b64 exec, -1')
    if c.dbg == 'pro':
        dump_lds(a, c)
        return
    for s in range(R):
        a(f'ds_read_b64 v[{20+2*s}:{21+2*s}], v{V_TAB0} offset:{s*64}')
    a(f's_mov_b32 s{S_SOFF}, 0')
    a('s_waitcnt lgkmcnt(0)')
    for s in range(R - 1):
        a(f'v_add_u32 v{V_A0}, v{20+2*s}, v{V_CHUNK}')
        a(f'v_add_u32 v{V_A1}, v{21+2*s}, v{V_CHUNK}')
        a(f's_add_u32 m0, s{S_RB}, {s*2048}')
        a('s_nop 0')
        a(f'buffer_load_dwordx4 v{V_A0}, s[{SRD_X}:{SRD_X+3}], s{S_SOFF} offen {c.aux} lds')
        a(f's_add_u32 m0, s{S_RB}, {s*2048+1024}')
        a('s_nop 0')
        a(f'buffer_load_dwordx4 v{V_A1}, s[{SRD_X}:{SRD_X+3}], s{S_SOFF} offen {c.aux} lds')
    a(f'v_mov_b32 v{V_ENT}, v{20+2*(R-1)}\nv_mov_b32 v{V_ENT+1}, v{21+2*(R-1)}')
    a(f's_mov_b32 s{S_P}, s{S_RB}')
    a(f's_add_u32 s{S_Q}, s{S_RB}, {(R-1)*2048}')

    def back(par):
        if 'noback' in c.abl: return
        s = SET[par]
        a(f'v_mfma_f32_32x32x16_bf16 v[{AGG}:{AGG+15}], v[{s}:{s+3}], v[{s+8}:{s+11}], v[{AGG}:{AGG+15}]')
        a(f'v_mfma_f32_32x32x16_bf16 v[{AGG+16}:{AGG+31}], v[{s+4}:{s+7}], v[{s+8}:{s+11}], v[{AGG+16}:{AGG+31}]')

    def fwrite(p):
        if 'nofw' in c.abl: return
        a('s_nop 7\ns_nop 3')
        for T in range(2):
            for i in range(8):
                a(f'v_cvt_pk_bf16_f32 v{G2B+8*T+i}, v{AGG+16*T+2*i}, v{AGG+16*T+2*i+1}')
        a('s_mov_b64 exec, s[42:43]')
        for T in range(2):
            for u in range(2):
                a(f'ds_write_b128 v{V_FW}, v[{G2B+8*T+4*u}:{G2B+8*T+4*u+3}] offset:{(p&1)*24576 + T*3072 + u*1536}')
        a('s_mov_b64 exec, -1')
        for i in range(0, 32, 2):
            a(f'v_mov_b64 v[{AGG+i}:{AGG+i+1}], 0')

    def step(p, s, dyn=False, second=False):
        par = s & 1
        cur, prev = (S_P, S_Q) if par == 0 else (S_Q, S_P)
        st = SET[par]
        tasks = []
        if not dyn and p > 0 and B <= s < B + NG and 'nog2' not in c.abl:
            tasks = g2_tasks(p - 1)[(s - B) * GP:(s - B + 1) * GP]
        if not dyn and s == 0: stp.issue()
        extra = 1 if (c.pf >= 0 and not dyn and p < 7 and c.pf < s <= c.pf + R - 1) else 0
        a(f's_waitcnt vmcnt({2*(R-2)+extra}) lgkmcnt(0)')
        if not dyn and s == 0: stp.save(f'ph{p}')
        if not dyn and p > 0 and s == B and 'nobar' not in c.abl:
            a('s_barrier')
        a(f'v_add_u32 v{V_A0}, v{V_ENT}, v{V_CHUNK}')
        a(f'v_add_u32 v{V_A1}, v{V_ENT+1}, v{V_CHUNK}')
        def dma0():
            if 'nodma' not in c.abl: a(f'buffer_load_dwordx4 v{V_A0}, s[{SRD_X}:{SRD_X+3}], s{S_SOFF} offen {c.aux} lds')
        def dma1():
            if 'nodma' not in c.abl: a(f'buffer_load_dwordx4 v{V_A1}, s[{SRD_X}:{SRD_X+3}], s{S_SOFF} offen {c.aux} lds')
        def tabread():
            if dyn:
                a(f'ds_read_b64 v[{V_ENT}:{V_ENT+1}], v{V_TABP} offset:{(R + par)*64}')
            else:
                a(f'ds_read_b64 v[{V_ENT}:{V_ENT+1}], v{V_TAB0} offset:{(s + R)*64}')
        if c.order == 0:
            a(f's_mov_b32 m0, s{prev}')
        for n, (foff, wreg, dreg) in enumerate(tasks):
            a(f'ds_read_b128 v[{G2B+4*n}:{G2B+4*n+3}], v{V_FR} offset:{foff}')
        if c.order == 0:
            if not tasks:
                a(f'v_add_u32 v{V_R0}, s{cur}, v{V_TRL0}')
            dma0()
            a(f's_add_u32 m0, s{prev}, 1024')
            tabread()
            dma1()
            if not dyn and s == 0 and p > 0:
                a(f's_add_u32 s{S_SOFF}, s{S_SOFF}, 128')
            if c.pf >= 0 and not dyn and p < 7 and s == c.pf:
                a(f'buffer_load_dword v245, v244, s[{SRD_X}:{SRD_X+3}], s{S_SOFF} offen')
            if tasks:
                a(f'v_add_u32 v{V_R0}, s{cur}, v{V_TRL0}')
        else:
            a(f'v_add_u32 v{V_R0}, s{cur}, v{V_TRL0}')
            a(f's_mov_b32 s48, s{prev}')
        a(f'v_add_u32 v{V_R1}, s{cur}, v{V_TRL1}')
        if dyn:
            a(f'v_bfe_i32 v{V_T}, v{V_MASK}, s{S_SIG}, 1')
        else:
            a(f'v_bfe_i32 v{V_T}, v{V_MASK}, {s}, 1')
        if not dyn and s == 0:
            a(f'v_bfi_b32 v{V_CA}, v{V_T}, v{V_COEF0}, s{S_ZERO}')
            a(f'v_add_u32 v{V_COEFP}, 128, v{V_COEF0}')
        else:
            a(f'v_bfi_b32 v{V_CA}, v{V_T}, v{V_COEFP}, s{S_ZERO}')
            a(f'v_add_u32 v{V_COEFP}, 128, v{V_COEFP}')
        if 'notr' not in c.abl:
            a(f'ds_read_b64_tr_b16 v[{st}:{st+1}], v{V_R0}')
            a(f'ds_read_b64_tr_b16 v[{st+2}:{st+3}], v{V_R0} offset:512')
            a(f'ds_read_b64_tr_b16 v[{st+4}:{st+5}], v{V_R1}')
            a(f'ds_read_b64_tr_b16 v[{st+6}:{st+7}], v{V_R1} offset:512')
            a(f'ds_read_b128 v[{st+8}:{st+11}], v{V_CA}')
        if c.order == 1:
            tabread()
        a(f's_add_u32 s{prev}, s{cur}, 2048')
        a(f's_cmp_eq_u32 s{prev}, s{S_RE}')
        a(f's_cselect_b32 s{prev}, s{S_RB}, s{prev}')
        if dyn:
            a(f's_add_u32 s{S_SIG}, s{S_SIG}, 1')
        if not dyn and s == 0:
            if p > 0:
                back(1)
                fwrite(p - 1)
            if p == 7:
                a(f'v_lshl_add_u32 v60, v{V_LANE}, 3, s47')
                a(f'v_mov_b32 v62, {OOB}\nv_mov_b32 v63, {OOB}')
                a(f's_bfm_b64 exec, {R*8}, 0')
                a('ds_write_b64 v60, v[62:63]')
                a('s_mov_b64 exec, -1')
        else:
            back(par ^ 1)
        if c.order == 1:
            a('s_mov_b32 m0, s48')
            a('s_nop 0')
            dma0()
            a('s_add_u32 m0, s48, 1024')
            a('s_nop 0')
            dma1()
            if not dyn and s == 0 and p > 0:
                a(f's_add_u32 s{S_SOFF}, s{S_SOFF}, 128')
        if tasks:
            a('s_waitcnt lgkmcnt(%d)' % (6 if 'notr' not in c.abl else 1))
            for n, (foff, wreg, dreg) in enumerate(tasks):
                a(f'v_mfma_f32_16x16x32_bf16 v[{dreg}:{dreg+3}], v[{wreg}:{wreg+3}], v[{G2B+4*n}:{G2B+4*n+3}], v[{dreg}:{dreg+3}]')

    for p in range(8):
        a(f'; ---------------- phase {p}')
        for s in range(S0):
            step(p, s)
        a(f's_sub_u32 s{S_REM}, s{S_N}, {S0}')
        a(f's_cmp_eq_u32 s{S_REM}, 0\ns_cbranch_scc1 K2_PE{p}')
        a(f's_mov_b32 s{S_SIG}, {S0}')
        a(f'v_add_u32 v{V_TABP}, {S0*64}, v{V_TAB0}')
        a(f'K2_PL{p}:')
        step(p, 0, dyn=True)
        step(p, 1, dyn=True)
        a(f'v_add_u32 v{V_TABP}, 128, v{V_TABP}')
        a(f's_sub_u32 s{S_REM}, s{S_REM}, 2')
        a(f's_cmp_lg_u32 s{S_REM}, 0\ns_cbranch_scc1 K2_PL{p}')
        a(f'K2_PE{p}:')
    stp.issue()
    a('s_waitcnt lgkmcnt(0)')
    stp.save('tail')
    back(1)
    fwrite(7)
    a('s_waitcnt lgkmcnt(0)')
    a('s_barrier')
    tasks = g2_tasks(7)
    for b in range(0, 24, 6):
        for n, (foff, wreg, dreg) in enumerate(tasks[b:b+6]):
            a(f'ds_read_b128 v[{G2B+4*n}:{G2B+4*n+3}], v{V_FR} offset:{foff}')
        for n, (foff, wreg, dreg) in enumerate(tasks[b:b+6]):
            a(f's_waitcnt lgkmcnt({5-n})')
            a(f'v_mfma_f32_16x16x32_bf16 v[{dreg}:{dreg+3}], v[{wreg}:{wreg+3}], v[{G2B+4*n}:{G2B+4*n+3}], v[{dreg}:{dreg+3}]')
    if c.twice:
        a('s_cmp_eq_u32 s49, 0x1234\ns_cbranch_scc1 K2_EPI')
        a('s_mov_b32 s49, 0x1234')
        a('s_barrier')
        a('s_branch K2_RELOAD')
    a(f's_cmp_eq_u32 s{S_MODE}, 0\ns_cbranch_scc1 K2_EPI')
    a(f's_cmp_lg_u32 s{S_MORE}, 0\ns_cbranch_scc0 K2_NEXTC')
    a(f's_add_u32 s{S_J0}, s{S_J0}, 20')
    a('s_branch K2_RELOAD')
    a('K2_NEXTC:')
    a(f's_mov_b32 s{S_J0}, 0')
    a(f's_add_u32 s{S_C0}, s{S_C0}, 11')
    a(f's_cmp_ge_u32 s{S_C0}, {NCH}\ns_cbranch_scc1 K2_EPI')
    a('s_branch K2_RELOAD')
    a('K2_FALLBACK:')
    a(f's_mov_b32 s{S_MODE}, 1\ns_mov_b32 s{S_CN}, 11\ns_mov_b32 s{S_C0}, 0\ns_mov_b32 s{S_J0}, 0')
    a('s_barrier')
    a('K2_RELOAD:')
    a('s_waitcnt vmcnt(0)')
    a('v_lshrrev_b32 v61, 1, v0')
    a(f'v_add_u32 v61, s{S_C0}, v61')
    a('v_min_u32 v61, 255, v61')
    a(f'v_lshlrev_b32 v62, {10 if c.newk1 else 2}, v61')
    a(f'buffer_load_dword v63, v62, s[{SRD_WS}:{SRD_WS+3}], s36 offen')
    a('s_branch K2_ROUND')
    a('K2_EPI:')
    stp.full('epi')
    a('s_nop 7')
    a(f'v_and_b32 v2, 15, v{V_LANE}\nv_lshrrev_b32 v3, 4, v{V_LANE}')
    a('s_mul_i32 s36, s2, 40960')
    a(f's_lshl_b32 s37, s{S_W}, 5\ns_add_u32 s36, s36, s37')
    a('v_lshlrev_b32 v2, 10, v2')
    a('v_lshl_add_u32 v2, v3, 3, v2')
    a('v_add_u32 v2, s36, v2')
    a('v_add_u32 v3, 0x4000, v2\nv_add_u32 v4, 0x8000, v2')
    a('s_mov_b32 s45, 0xbfb8aa3b')
    for nt in range(3):
        g = 20 + 4 * nt
        for r in range(4):
            a(f'v_mul_f32 v{g+r}, s45, v{OUT + nt*4 + r}')
        for r in range(4):
            a(f'v_exp_f32 v{g+r}, v{g+r}')
        a('s_nop 0')
        for r in range(4):
            a(f'v_add_f32 v{g+r}, 1.0, v{g+r}')
        for r in range(4):
            a(f'v_rcp_f32 v{g+r}, v{g+r}')
    a('s_nop 0')
    for nt in range(3):
        g = 20 + 4 * nt
        for o in range(1, 4):
            for r in range(4):
                q = OUT + (o * 3 + nt) * 4 + r
                a(f'v_mul_f32 v{q}, v{q}, v{g+r}')
    tmp = 32
    for nt in range(3):
        if nt == 2:
            a('s_mov_b32 s46, 0x00ff00ff\ns_mov_b32 s47, 0x00ff00ff\ns_mov_b64 exec, s[46:47]')
        for o in range(4):
            q = OUT + (o * 3 + nt) * 4
            a(f'v_cvt_pk_bf16_f32 v{tmp}, v{q}, v{q+1}')
            a(f'v_cvt_pk_bf16_f32 v{tmp+1}, v{q+2}, v{q+3}')
            a(f'buffer_store_dwordx2 v[{tmp}:{tmp+1}], v{2+nt}, s[{SRD_OUT}:{SRD_OUT+3}], 0 offen offset:{o*256}')
            tmp += 2
    if c.stamp: a('s_mov_b64 exec, -1')
    stp.full('st_issued')
    a('s_waitcnt vmcnt(0)')
    stp.full('end')
    if c.stamp:
        a(f'v_mov_b32 v4, s{S_N}')
        a(f's_mov_b32 s{stp.base+len(stp.names)}, s{S_N}')
        stp.names.append('N')
        a(f's_mov_b32 s{stp.base+len(stp.names)}, s{S_MODE}')
        stp.names.append('mode')
        print('K2 stamps:', stp.names)
    stp.dump(34, WS_ST2, S_W, 8, 96)
    if c.calib:
        a(f's_add_u32 s96, s34, {WS_ST1}\ns_addc_u32 s97, s35, 0')
        a(f's_mov_b32 s98, {250*8*128}\ns_mov_b32 s99, 0x20000')
        a('s_mov_b64 exec, -1')
        a('v_mov_b32 v3, 0')
        a('buffer_load_dword v5, v3, s[96:99], 0 offen')
        a('s_waitcnt vmcnt(0)')
        a('v_readfirstlane_b32 s36, v5')
        a('K2_CAL:')
        a('s_memrealtime s[38:39]')
        a('s_waitcnt lgkmcnt(0)')
        a('s_sub_u32 s38, s38, s36')
        a(f's_cmp_lt_u32 s38, {c.calib}')
        a('s_cbranch_scc1 K2_CAL')
    if c.dbgstamp:
        nm = stp.names
        a('s_load_dwordx2 s[30:31], s[0:1], 80')
        a(f's_add_u32 s96, s34, {WS_ST1}\ns_addc_u32 s97, s35, 0')
        a(f's_mov_b32 s98, {250*8*128}\ns_mov_b32 s99, 0x20000')
        a(f's_min_u32 s36, s{S_W}, 4\ns_lshl_b32 s37, s2, 3\ns_add_u32 s36, s36, s37\ns_lshl_b32 s36, s36, 7')
        a('s_mov_b64 exec, -1')
        a('v_and_b32 v3, 63, v0\nv_lshlrev_b32 v3, 2, v3')
        a('buffer_load_dword v5, v3, s[96:99], s36 offen')
        a('s_waitcnt vmcnt(0) lgkmcnt(0)')
        srd(a, 96, 30, 256)
        def R(n): return f's{stp.base + nm.index(n)}'
        a('v_readlane_b32 s36, v5, 0\nv_readlane_b32 s37, v5, 4\nv_readlane_b32 s38, v5, 1\nv_readlane_b32 s39, v5, 3')
        a('s_not_b32 s36, s36')
        a(f's_not_b32 s40, {R("start")}')
        a(f's_not_b32 s41, {R("end")}')
        slots = ['s36', 's37', 's40', R('start'), R('tbl_arr'), R('rec_arr'), R('scat_bar'), R('ph0'), R('ph1'), R('ph4'), R('tail'), R('epi'), R('end'), 's38', 's39', 's41']
        a('v_mov_b32 v2, 0')
        for i, r in enumerate(slots):
            a(f'v_writelane_b32 v2, {r}, {i}')
        a('s_mov_b64 exec, 0xffff')
        a('buffer_atomic_umax v2, v3, s[96:99], 0 offen')
        a('s_waitcnt vmcnt(0)')
    a('K2_END:')
    a('s_endpgm')


def dump_lds(a, c):
    n = (c.LDS + 8191) // 8192
    a('s_waitcnt lgkmcnt(0)\ns_barrier')
    a(f's_mul_i32 s36, s2, {n*8192}')
    a(f's_add_u32 s30, s34, {WS_DBG}\ns_addc_u32 s31, s35, 0')
    srd(a, 48, 30, 250 * n * 8192)
    a('v_lshlrev_b32 v60, 4, v0')
    for k in range(n):
        a(f'v_add_u32 v61, {k*8192}, v60')
        if (k + 1) * 8192 > c.LDS:
            a(f'v_min_u32 v61, {c.LDS-16}, v61')
        a('ds_read_b128 v[64:67], v61')
        a('s_waitcnt lgkmcnt(0)')
        a('buffer_store_dwordx4 v[64:67], v60, s[48:51], s36 offen')
        a('s_add_u32 s36, s36, 8192')
        a('s_nop 1')
    a(f's_add_u32 s30, s34, {WS_DBG + 0x4000000}\ns_addc_u32 s31, s35, 0')
    srd(a, 48, 30, 250 * 4096)
    a('s_lshl_b32 s36, s2, 12')
    a('v_lshlrev_b32 v60, 3, v0')
    a(f'v_mov_b32 v62, v{V_MASK}\nv_mov_b32 v63, s{S_N}')
    a('buffer_store_dwordx2 v[62:63], v60, s[48:51], s36 offen')
    a('s_waitcnt vmcnt(0)')
    a('K2_END:')
    a('s_endpgm')


def build(**kw):
    c = Cfg(**kw)
    a = Asm()
    hdr = header()
    if c.newk1:
        import gen2_k1
        hdr.append(f'; @launch kernel={K1} grid=({gen2_k1.K1_GRID},1,1) block=(320,1,1) lds={gen2_k1.K1_LDS}')
    else:
        hdr.append(f'; @launch kernel={K1} grid=({NCH},1,1) block=(384,1,1) lds=2048')
    hdr.append(f'; @launch kernel={K2} grid=({NBIN},1,1) block=(512,1,1) lds={c.LDS}')
    a.L += hdr
    a.L.append('.amdgcn_target "amdgcn-amd-amdhsa--gfx950"')
    a.L.append('.text')
    gen_k2(a, c)
    if c.newk1:
        gen2_k1.gen_k1(a, stamp=c.stamp, old=True, sc=c.k1sc)
    else:
        gen_k1(a, warm=c.warm, stamp=c.stamp)
    a.L.append('.section .rodata,"a"')
    a.L.append('.p2align 6')
    txt = a.text() + descriptor(K2, 256, 102) + '.p2align 6\n' + descriptor(K1, 72, 102 if c.stamp else 64)
    return txt, c


if __name__ == '__main__':
    kw = eval('dict(' + (sys.argv[2] if len(sys.argv) > 2 else '') + ')')
    txt, c = build(**kw)
    out = sys.argv[1] if len(sys.argv) > 1 else 'cdna_kernels/' + NAME + '.s'
    open(out, 'w').write(txt)
    print('written', out, 'LDS', c.LDS, 'lines', txt.count('\n'))
```

```python
from gen import Asm, srd, Stamp, descriptor, header, NAME, K2, K1

NBIN = 250
NCH = 250
CHUNK = 1280
WS_REC = 0
WS_TBL = 0x400000
WS_WF = 0x480000
OOB = 0x7F000000
XBYTES = 10240000
WS_ST1 = 0x900000
WS_ST2 = 0xA00000
K1_GRID = NCH + 32
K1_LDS = 2048 + CHUNK * 12


def gen_k1(a, stamp=False, sc='sc0 sc1', old=False):
    st = Stamp(a, stamp, 62, 64)
    HIST, OFF, STG = 0, 1024, 2048
    a(f'.globl {K1}\n.p2align 8\n.type {K1},@function\n{K1}:')
    a(f's_cmp_ge_u32 s2, {K1_GRID}\ns_cbranch_scc1 K1_END')
    a('s_load_dwordx4 s[4:7], s[0:1], 8')
    a('s_load_dwordx4 s[8:11], s[0:1], 24')
    a('s_load_dwordx2 s[12:13], s[0:1], 88')
    st.full('start')
    a('v_lshrrev_b32 v1, 6, v0')
    a(f's_cmp_ge_u32 s2, {NCH}\ns_cbranch_scc1 K1_FOLD')
    a('v_readfirstlane_b32 s3, v1')
    a(f's_mul_i32 s14, s2, {CHUNK}')
    a('v_lshlrev_b32 v1, 2, v0')
    a('v_add_u32 v1, s14, v1')
    a('v_lshlrev_b32 v2, 2, v1')
    a('v_mul_u32_u24 v3, 6, v1')
    a('v_lshlrev_b32 v40, 1, v1')
    a('s_waitcnt lgkmcnt(0)')
    srd(a, 16, 10, 1280000)
    a('buffer_load_dwordx4 v[4:7], v2, s[16:19], 0 offen')
    srd(a, 20, 8, 1280000)
    a('buffer_load_dwordx4 v[8:11], v2, s[20:23], 0 offen')
    srd(a, 24, 4, 1920000)
    a('buffer_load_dwordx4 v[12:15], v3, s[24:27], 0 offen')
    a('buffer_load_dwordx2 v[16:17], v3, s[24:27], 0 offen offset:16')
    srd(a, 28, 6, 640000)
    a('buffer_load_dwordx2 v[18:19], v40, s[28:31], 0 offen')
    srd(a, 32, 12, 320000 * 12, WS_REC)
    srd(a, 36, 12, NCH * 1024, WS_TBL)
    a('s_cmp_lg_u32 s3, 0\ns_cbranch_scc1 K1_NOZ')
    a('v_mov_b32 v44, 0\nv_mov_b32 v45, 0\nv_mov_b32 v46, 0\nv_mov_b32 v47, 0')
    a('v_lshlrev_b32 v41, 4, v0')
    a(f'ds_write_b128 v41, v[44:47] offset:{HIST}')
    a('s_waitcnt lgkmcnt(0)')
    a('K1_NOZ:')
    a('s_barrier')
    a('s_mov_b32 s40, -40')
    a('v_mov_b32 v42, 1')
    a(f's_mov_b32 s41, {STG}')
    a('s_waitcnt vmcnt(4)')
    st.full('dst_arr')
    for i in range(4):
        a(f'v_mul_u32_u24 v{48+i}, 52429, v{4+i}')
    for i in range(4):
        a(f'v_lshrrev_b32 v{48+i}, 21, v{48+i}')
    for i in range(4):
        a(f'v_mad_i32_i24 v{52+i}, v{48+i}, s40, v{4+i}')
        a(f'v_lshlrev_b32 v{48+i}, 2, v{48+i}')
    for i in range(4):
        a(f'ds_add_rtn_u32 v{56+i}, v{48+i}, v42 offset:{HIST}')
    if old:
        for i in range(4):
            a(f'v_mul_u32_u24 v{60+i}, 52, v{52+i}')
        for i in range(4):
            a(f'v_lshrrev_b32 v{60+i}, 8, v{60+i}')
        for i in range(4):
            a(f'v_mad_u32_u24 v{52+i}, v{60+i}, 3, v{52+i}')
    D0, D1, D2 = (0, 1, 2) if old else (2, 0, 1)
    a('s_waitcnt vmcnt(3)')
    for i in range(4):
        a(f'v_lshlrev_b32 v{60+i}, 10, v{8+i}')
        a(f'v_lshl_or_b32 v{20+D0+4*i}, v{52+i}, {24 if old else 3}, v{60+i}')
    a('s_waitcnt vmcnt(0)')
    a('v_lshlrev_b32 v60, 16, v18\nv_and_b32 v61, 0xffff0000, v18')
    a('v_lshlrev_b32 v62, 16, v19\nv_and_b32 v63, 0xffff0000, v19')
    ysrc = [[(12, 0), (12, 1), (13, 0)], [(13, 1), (14, 0), (14, 1)],
            [(15, 0), (15, 1), (16, 0)], [(16, 1), (17, 0), (17, 1)]]
    for i in range(4):
        for k in range(3):
            r, hi = ysrc[i][k]
            if hi:
                a(f'v_and_b32 v{64+k}, 0xffff0000, v{r}')
            else:
                a(f'v_lshlrev_b32 v{64+k}, 16, v{r}')
        for k in range(3):
            a(f'v_mul_f32 v{64+k}, v{60+i}, v{64+k}')
        a(f'v_cvt_pk_bf16_f32 v{20+D1+4*i}, v{60+i}, v64')
        a(f'v_cvt_pk_bf16_f32 v{20+D2+4*i}, v65, v66')
    a('s_waitcnt lgkmcnt(0)')
    st.full('rec_ready')
    a('s_barrier')
    a('v_and_b32 v41, 63, v0')
    a('v_lshlrev_b32 v43, 4, v41')
    a(f'ds_read_b128 v[4:7], v43 offset:{HIST}')
    a('s_waitcnt lgkmcnt(0)')
    a('v_add_u32 v8, v4, v5')
    a('v_add_u32 v9, v8, v6')
    a('v_add_u32 v10, v9, v7')
    a('v_mov_b32 v11, v10')
    for sh in (1, 2, 4, 8):
        a('s_nop 1')
        a(f'v_add_u32_dpp v11, v11, v11 row_shr:{sh} row_mask:0xf bank_mask:0xf')
    a('s_nop 1')
    a('v_add_u32_dpp v11, v11, v11 row_bcast:15 row_mask:0xa bank_mask:0xf')
    a('s_nop 1')
    a('v_add_u32_dpp v11, v11, v11 row_bcast:31 row_mask:0xc bank_mask:0xf')
    a('v_sub_u32 v12, v11, v10')
    a('v_add_u32 v13, v12, v4')
    a('v_add_u32 v14, v12, v8')
    a('v_add_u32 v15, v12, v9')
    a(f'ds_write_b128 v43, v[12:15] offset:{OFF}')
    for i in range(4):
        a(f'ds_read_b32 v{60+i}, v{48+i} offset:{OFF}')
    a('s_cmp_lg_u32 s3, 0\ns_cbranch_scc1 K1_NOT')
    a('s_lshl_b32 s15, s2, 10')
    for i in range(4):
        a(f'v_lshl_or_b32 v{8+i}, v{4+i}, 16, v{12+i}')
    a(f'buffer_store_dwordx4 v[8:11], v43, s[36:39], s15 offen {sc}')
    a('K1_NOT:')
    a('s_waitcnt lgkmcnt(0)')
    for i in range(4):
        a(f'v_add_u32 v{60+i}, v{60+i}, v{56+i}')
        a(f'v_mad_u32_u24 v{60+i}, v{60+i}, 12, s41')
    for i in range(4):
        a(f'ds_write2_b32 v{60+i}, v{20+4*i}, v{21+4*i} offset0:0 offset1:1')
        a(f'ds_write_b32 v{60+i}, v{22+4*i} offset:8')
    a('v_lshlrev_b32 v2, 4, v0')
    a(f's_mul_i32 s15, s2, {CHUNK*12}')
    a('s_add_u32 s42, s15, 5120\ns_add_u32 s43, s15, 10240')
    a('s_waitcnt lgkmcnt(0)')
    a('s_barrier')
    for k in range(3):
        a(f'ds_read_b128 v[{4+4*k}:{7+4*k}], v2 offset:{STG + 5120*k}')
    for k, sr in enumerate(('s15', 's42', 's43')):
        a(f's_waitcnt lgkmcnt({2-k})')
        a(f'buffer_store_dwordx4 v[{4+4*k}:{7+4*k}], v2, s[32:35], {sr} offen {sc}')
    st.full('st_issued')
    if stamp:
        a('s_waitcnt vmcnt(0)')
        st.full('end')
        st.dump(12, WS_ST1, 3, 8, 44)
    a('s_endpgm')
    a('K1_FOLD:')
    a('v_readfirstlane_b32 s3, v1')
    a('s_load_dwordx2 s[18:19], s[0:1], 40')
    a('s_load_dwordx4 s[20:23], s[0:1], 48')
    a('v_and_b32 v1, 63, v0')
    a(f's_sub_u32 s14, s2, {NCH}\ns_mul_i32 s14, s14, 5\ns_add_u32 s14, s14, s3')
    a('s_mul_i32 s24, s14, 3277\ns_lshr_b32 s24, s24, 16')
    a('s_mul_i32 s25, s24, 20\ns_sub_u32 s25, s14, s25')
    a('s_lshr_b32 s26, s25, 2\ns_and_b32 s27, s25, 3')
    a('s_waitcnt lgkmcnt(0)')
    srd(a, 48, 18, 1280)
    a('s_cmp_eq_u32 s26, 0\ns_cselect_b32 s28, 1, 0')
    a('s_cmp_eq_u32 s26, 3\ns_cselect_b32 s28, 1, s28')
    a('s_cmp_eq_u32 s28, 1')
    a('s_cselect_b32 s52, s20, s22\ns_cselect_b32 s53, s21, s23')
    a('s_mov_b32 s54, 98304')
    a('s_cselect_b32 s54, 65536, s54')
    a('s_mov_b32 s55, 0x20000')
    a('s_lshr_b32 s29, s26, 1')
    a('s_mov_b32 s30, 0')
    a('s_cmp_eq_u32 s26, 1\ns_cselect_b32 s30, 2, s30')
    a('s_cmp_eq_u32 s26, 2\ns_cselect_b32 s30, 3, s30')
    a('s_cmp_eq_u32 s26, 3\ns_cselect_b32 s30, 1, s30')
    a('s_cmp_eq_u32 s26, 4\ns_cselect_b32 s30, 4, s30')
    srd(a, 56, 12, 160 * 1024, WS_WF)
    a('v_lshrrev_b32 v2, 4, v1\nv_and_b32 v3, 15, v1')
    a('v_lshrrev_b32 v4, 1, v2\nv_and_b32 v5, 1, v2')
    a('v_lshlrev_b32 v4, 4, v4\nv_lshl_add_u32 v4, v5, 2, v4')
    a('s_lshl_b32 s31, s27, 5')
    a('v_add_u32 v4, s31, v4')
    a('s_lshl_b32 s31, s30, 8')
    a('v_lshl_add_u32 v5, v4, 1, s31')
    a('s_lshl_b32 s31, s29, 15')
    a('s_lshl_b32 s33, s24, 5\ns_add_u32 s31, s31, s33')
    a('v_lshlrev_b32 v6, 8, v4')
    a('v_lshl_add_u32 v6, v3, 1, v6')
    a('v_add_u32 v6, s31, v6')
    a('buffer_load_dwordx2 v[8:9], v5, s[48:51], 0 offen')
    a('buffer_load_dwordx2 v[10:11], v5, s[48:51], 0 offen offset:16')
    for j in range(8):
        a(f'buffer_load_ushort v{12+j}, v6, s[52:55], 0 offen offset:{(j&3)*256 + (j>>2)*2048}')
    a('s_waitcnt vmcnt(0)')
    for j in range(8):
        r = 8 + (j >> 1)
        if j & 1:
            a(f'v_and_b32 v{40+j}, 0xffff0000, v{r}')
        else:
            a(f'v_lshlrev_b32 v{40+j}, 16, v{r}')
    for j in range(8):
        a(f'v_lshlrev_b32 v{12+j}, 16, v{12+j}')
    for j in range(8):
        a(f'v_mul_f32 v{40+j}, v{40+j}, v{12+j}')
    for j in range(4):
        a(f'v_cvt_pk_bf16_f32 v{48+j}, v{40+2*j}, v{41+2*j}')
    a('s_lshl_b32 s35, s14, 10')
    a('v_lshlrev_b32 v7, 4, v1')
    a(f'buffer_store_dwordx4 v[48:51], v7, s[56:59], s35 offen {sc}')
    if stamp:
        st.names = ['start']
        st.full('hend')
        a('s_waitcnt vmcnt(0)')
    a('K1_END:')
    a('s_endpgm')
```

```python
import sys
from gen import Asm, srd, Stamp, descriptor, header, NAME, K2, K1
import gen2_k1
from gen2_k1 import NBIN, NCH, CHUNK, WS_REC, WS_TBL, WS_WF, OOB, XBYTES, WS_ST1, WS_ST2

WS_DBG = 0x1000000


class Cfg:
    def __init__(self, **kw):
        self.R = 4
        self.NMAX = 12
        self.NMIN = 9
        self.B = 2
        self.dma_first = True
        self.g2first = True
        self.stamp = False
        self.abl = ''
        self.dbg = None
        self.k1sc = 'sc0 sc1'
        self.osc = 'sc0 sc1'
        self.zero7 = True
        self.force_slow = False
        for k, v in kw.items():
            assert hasattr(self, k), k
            setattr(self, k, v)
        self.AW = 18432
        self.STG = 6144
        self.FO = 8192
        self.TBL = 0
        self.CNT = self.TBL + 8192
        self.FLAG = self.CNT + 512
        self.OFF = self.CNT + 1024
        self.AB = 10240
        self.LDS = self.AB + 8 * self.AW
        assert self.LDS <= 163840


V_LANE, V_TRL0, V_TRL1, V_R0, V_R1, V_FW, V_FRA, V_FRB, V_CHUNK, V_L16 = 1, 2, 3, 4, 5, 6, 7, 8, 9, 10
SET = (16, 24)
G2B = 32
AGG = 48
OUT = 80
WREG = 128
COEF = 176
PA = 224
S_W = 3
SRD_X, SRD_X1, SRD_WS, SRD_OUT = 4, 8, 12, 16
S_N, S_SOFF, S_RO, S_RB, S_C0, S_CN, S_J0, S_MODE, S_MORE, S_TG = 20, 21, 22, 23, 24, 25, 26, 27, 28, 29
S_FWM = 42
S_WB = 44
S_NODE = 72
S_FT = 77
S_MASK = 78
NREC = 10


def rec(i): return 16 + 4 * i
def la(i): return 56 + i
def offp(i): return COEF + 2 * i
V_MT = 66


def wslot(mat, Tp):
    return {(0, 0): 0, (0, 1): 1, (1, 0): 2, (1, 1): 3, (0, 2): 4, (0, 3): 5, (1, 2): 6, (1, 3): 7,
            (2, 0): 8, (2, 1): 9, (3, 0): 10, (3, 1): 11, (4, 0): 0, (4, 1): 1,
            (2, 2): 2, (2, 3): 3, (3, 2): 4, (3, 3): 5, (4, 2): 6, (4, 3): 7}[(mat, Tp)]


def g2_plan(pr, c):
    g, half = pr >> 1, pr & 1
    sign = {(1, 2): 1, (2, 0): 1, (0, 1): 1, (2, 1): -1, (1, 0): -1, (0, 2): -1}
    def group(pp, mat, o):
        out = []
        for T in range(2):
            for nt in range(3):
                Tp = 2 * half + T
                base = V_FRA if pp < 2 else V_FRB
                off = (pp & 1) * (c.AW + 32) + T * 3072 + nt * 256
                out.append(('mm', base, off, WREG + 4 * wslot(mat, Tp), OUT + (o * 3 + nt) * 4))
        return out
    if g == 0:
        lst = group(0, 0, 0)
        for pp in range(1, 4):
            lst += group(pp, 1, pp)
        return lst
    k = g - 1
    js = [j for j in range(3) if j != k]
    state = 1 if k % 2 == 0 else -1
    first = [j for j in js if sign[(j, k)] == state][0]
    second = [j for j in js if j != first][0]
    lst = group(1 + first, 4, 1 + (3 - first - k))
    lst += group(0, 2, 1 + k)
    lst += group(1 + k, 3, 0)
    lst += [('flip', half)]
    lst += group(1 + second, 4, 1 + (3 - second - k))
    return lst


def wload(a, slot, f, tmp):
    a(f'buffer_load_dwordx4 v[{WREG+4*slot}:{WREG+4*slot+3}], v{V_L16}, s[{SRD_WS}:{SRD_WS+3}], s{tmp} offen offset:{1024*(f&3)}')


def gen_k2(a, c):
    R, B, NMAX, NMIN, AW = c.R, c.B, c.NMAX, c.NMIN, c.AW
    assert R == 4
    stp = Stamp(a, c.stamp, 50, 52)
    l = V_LANE
    a(f'.globl {K2}\n.p2align 8\n.type {K2},@function\n{K2}:')
    a(f's_cmp_ge_u32 s2, {NBIN}\ns_cbranch_scc1 K2_END')
    a('s_load_dwordx2 s[30:31], s[0:1], 0')
    a('s_load_dwordx2 s[32:33], s[0:1], 72')
    a('s_load_dwordx2 s[34:35], s[0:1], 88')
    a('s_and_b32 s36, s2, 7\ns_lshr_b32 s37, s2, 3\ns_mul_i32 s38, s36, 31\ns_min_u32 s36, s36, 2')
    a('s_add_u32 s38, s38, s36\ns_add_u32 s2, s38, s37')
    a(f'v_and_b32 v{l}, 63, v0')
    a('v_lshrrev_b32 v60, 6, v0')
    a(f's_lshl_b32 s{S_TG}, s2, 2\ns_add_u32 s{S_TG}, s{S_TG}, {WS_TBL}')
    a(f'v_readfirstlane_b32 s{S_W}, v60')
    a(f's_mov_b32 s{S_C0}, 0\ns_mov_b32 s{S_CN}, {NCH}\ns_mov_b32 s{S_J0}, 0\ns_mov_b32 s{S_MODE}, 0')
    a('v_lshrrev_b32 v61, 1, v0')
    a('v_lshlrev_b32 v62, 10, v61')
    stp.issue()
    a('s_waitcnt lgkmcnt(0)')
    stp.save('start')
    srd(a, SRD_WS, 34, WS_WF + 160 * 1024)
    a(f'buffer_load_dword v63, v62, s[{SRD_WS}:{SRD_WS+3}], s{S_TG} offen')
    srd(a, SRD_X, 30, XBYTES)
    a(f's_sub_u32 s{SRD_X1}, s30, 1024\ns_subb_u32 s{SRD_X1+1}, s31, 0')
    a(f's_mov_b32 s{SRD_X1+2}, {XBYTES+1024}\ns_mov_b32 s{SRD_X1+3}, 0x20000')
    srd(a, SRD_OUT, 32, XBYTES)
    a(f's_mul_i32 s{S_WB}, s{S_W}, 20480\ns_add_u32 s{S_WB}, s{S_WB}, {WS_WF}')
    a(f's_mul_i32 s{S_RB}, s{S_W}, {AW}\ns_add_u32 s{S_RB}, s{S_RB}, {c.AB}')
    a(f's_mov_b32 s{S_FT}, {4*AW}')
    a(f's_mov_b32 s{S_MASK}, 0xfffffc00')
    a(f's_mov_b32 s{S_FWM}, 0x000fffff\ns_mov_b32 s{S_FWM+1}, 0x000fffff')
    a(f'v_lshlrev_b32 v{V_L16}, 4, v{l}')
    a(f'v_and_b32 v66, 7, v{l}')
    a(f'v_bfe_u32 v67, v{l}, 4, 1')
    a('v_lshlrev_b32 v68, 2, v67\nv_xor_b32 v68, v68, v66')
    a(f'v_lshlrev_b32 v{V_CHUNK}, 4, v68')
    a(f'v_bfe_u32 v68, v{l}, 2, 2')
    a(f'v_and_b32 v69, 3, v{l}')
    a(f'v_lshrrev_b32 v70, 5, v{l}')
    a('v_lshl_add_u32 v71, v70, 3, v68')
    a('v_lshlrev_b32 v71, 7, v71')
    a('v_lshrrev_b32 v72, 1, v69')
    a('v_lshl_add_u32 v72, v67, 1, v72')
    a('v_lshrrev_b32 v73, 1, v68\nv_lshlrev_b32 v73, 2, v73')
    a('v_xor_b32 v72, v72, v73')
    a('v_lshl_add_u32 v71, v72, 4, v71')
    a('v_and_b32 v73, 1, v69')
    a('v_lshl_add_u32 v71, v73, 3, v71')
    a(f'v_add_u32 v{V_TRL0}, s{S_RB}, v71')
    a('v_xor_b32 v71, 64, v71')
    a(f'v_add_u32 v{V_TRL1}, s{S_RB}, v71')
    a(f's_mul_i32 s39, s{S_W}, 80\ns_add_u32 s39, s39, {c.AB + c.FO}')
    a(f's_mov_b32 s40, {AW+32}')
    a('v_mul_lo_u32 v72, v69, s40')
    a('v_mul_u32_u24 v73, 768, v70')
    a('v_add3_u32 v72, v72, v73, s39')
    a(f'v_bfe_u32 v73, v{l}, 2, 3')
    a(f'v_lshl_add_u32 v{V_FW}, v73, 4, v72')
    a(f'v_lshrrev_b32 v72, 4, v{l}\nv_mul_u32_u24 v72, 768, v72')
    a(f'v_and_b32 v73, 15, v{l}')
    a('v_lshl_add_u32 v72, v73, 4, v72')
    a(f'v_add_u32 v{V_FRA}, {c.AB + c.FO}, v72')
    a(f'v_add_u32 v{V_FRB}, {c.AB + c.FO + 2*(AW+32)}, v72')
    for i in range(0, 48, 2):
        a(f'v_mov_b64 v[{OUT+i}:{OUT+i+1}], 0')
    a('K2_ROUND:')
    a('v_mov_b64 v[68:69], 0\nv_mov_b64 v[70:71], 0')
    a(f'v_mov_b32 v72, {OOB}\nv_mov_b32 v73, {OOB}\nv_mov_b32 v74, {OOB}\nv_mov_b32 v75, {OOB}')
    a(f'v_add_u32 v76, s{S_RB}, v{V_L16}')
    for k in range(12):
        a(f'ds_write_b128 v76, v[68:71] offset:{c.STG + 1024*k}')
    a(f's_lshl_b32 s38, s{S_W}, 10\ns_add_u32 s38, s38, {c.TBL}')
    a(f'v_add_u32 v77, s38, v{V_L16}')
    a('ds_write_b128 v77, v[72:75]')
    a(f's_cmp_lg_u32 s{S_W}, 0\ns_cbranch_scc1 K2_I1')
    a(f'v_add_u32 v77, {c.CNT}, v{V_L16}')
    a('ds_write_b128 v77, v[68:71]')
    a('K2_I1:')
    a('s_waitcnt vmcnt(0)')
    stp.full('tbl_arr')
    a('v_lshrrev_b32 v61, 1, v0')
    a('v_and_b32 v62, 1, v0')
    a(f'v_add_u32 v64, s{S_C0}, v61')
    a(f'v_cmp_gt_u32 vcc, s{S_CN}, v61')
    a(f's_mov_b32 s45, {NCH}')
    a('v_cmp_gt_u32 s[40:41], s45, v64')
    a('s_nop 1')
    a('s_and_b64 vcc, vcc, s[40:41]')
    a('v_cndmask_b32 v63, 0, v63, vcc')
    a('v_lshrrev_b32 v65, 16, v63')
    a('v_and_b32 v67, 0xffff, v63')
    a(f'v_subrev_u32 v65, s{S_J0}, v65')
    a('v_max_i32 v65, 0, v65')
    a(f'v_min_u32 v{V_MT}, 20, v65')
    a(f'v_sub_u32 v{V_MT}, v{V_MT}, v62')
    a(f'v_add_u32 v{V_MT}, 1, v{V_MT}')
    a(f'v_lshrrev_b32 v{V_MT}, 1, v{V_MT}')
    a(f'v_mul_u32_u24 v64, {CHUNK}, v64')
    a(f'v_add3_u32 v64, v64, v67, s{S_J0}')
    a('v_add_u32 v64, v64, v62')
    a('v_mul_u32_u24 v64, 12, v64')
    for i in range(NREC):
        a(f'v_cmp_lt_u32 vcc, {i}, v{V_MT}')
        a('s_and_b64 exec, exec, vcc')
        a('s_cbranch_execz K2_LD_DONE')
        a(f'buffer_load_dwordx3 v[{rec(i)}:{rec(i)+2}], v64, s[{SRD_WS}:{SRD_WS+3}], 0 offen offset:{24*i}')
    a('K2_LD_DONE:')
    a('s_mov_b64 exec, -1')
    a(f's_add_u32 s37, s{S_WB}, 4096\ns_add_u32 s38, s{S_WB}, 8192\ns_add_u32 s39, s{S_WB}, 12288')
    for slot, f in enumerate((0, 1, 4, 5, 2, 3, 6, 7, 8, 9, 12, 13)):
        wload(a, slot, f, (S_WB, 37, 38, 39)[f >> 2])
    a('v_mov_b32 v68, 1')
    a('s_waitcnt lgkmcnt(0)')
    a('s_barrier')
    a('v_cmp_lt_u32 vcc, 20, v65')
    a('s_and_saveexec_b64 s[40:41], vcc')
    a('s_cbranch_execz K2_NOMORE')
    a(f'v_mov_b32 v69, {c.FLAG}')
    a('ds_write_b32 v69, v68')
    a('K2_NOMORE:')
    a('s_mov_b64 exec, s[40:41]')
    a('s_waitcnt vmcnt(12)')
    stp.full('rec_arr')
    for i in range(NREC):
        a(f'v_cmp_lt_u32 vcc, {i}, v{V_MT}')
        a('s_and_b64 exec, exec, vcc')
        a('s_cbranch_execz K2_RK_DONE')
        a(f'v_and_b32 v{la(i)}, 0x3f8, v{rec(i)+2}')
        a(f'ds_add_rtn_u32 v{rec(i)+3}, v{la(i)}, v68 offset:{c.CNT}')
    a('K2_RK_DONE:')
    a('s_mov_b64 exec, -1')
    a(f'v_lshrrev_b32 v70, 3, v{l}')
    a(f'v_and_b32 v71, 7, v{l}')
    a(f's_mov_b32 s45, {AW}')
    a('v_mul_lo_u32 v72, v70, s45')
    a('v_lshl_add_u32 v72, v71, 3, v72')
    a(f'v_add_u32 v72, {c.AB + c.STG}, v72')
    a('v_lshlrev_b32 v73, 10, v70')
    a(f'v_add_u32 v73, {c.TBL}, v73')
    a(f'v_lshlrev_b32 v67, 3, v{l}')
    a(f'v_mov_b32 v69, {c.FLAG}')
    a('s_waitcnt lgkmcnt(0)')
    a('s_barrier')
    stp.full('rank_bar')
    a(f'ds_read_b32 v68, v67 offset:{c.CNT}')
    a('ds_read_b32 v70, v69')
    a(f'v_cmp_gt_u32 vcc, 40, v{l}')
    a(f's_cmp_eq_u32 s{S_MODE}, 0')
    a('s_waitcnt lgkmcnt(0)')
    a(f'v_readfirstlane_b32 s{S_MORE}, v70')
    a('s_cbranch_scc0 K2_IDENT')
    if c.force_slow:
        a('s_branch K2_FALLBACK')
    a(f's_cmp_lg_u32 s{S_MORE}, 0\ns_cbranch_scc1 K2_FALLBACK')
    T0 = 196
    a('v_med3_u32 v71, v68, 17, 47')
    a('v_subrev_u32 v71, 16, v71')
    a('v_cndmask_b32 v71, 0, v71, vcc')
    for b in range(5):
        a(f'v_bfe_i32 v{T0+b}, v71, {b}, 1')
    MS = [36, 38, 40, 46, 48]
    for b in range(5):
        a(f'v_cmp_ne_u32_e64 s[{MS[b]}:{MS[b]+1}], 0, v{T0+b}')
    a('s_nop 1')
    GL, GH, EL, EH, UL, UH = 201, 202, 203, 204, 205, 206
    for b in (4, 3, 2, 1, 0):
        m, t = MS[b], T0 + b
        if b == 4:
            a(f'v_bfi_b32 v{GL}, v{t}, 0, s{m}')
            a(f'v_bfi_b32 v{GH}, v{t}, 0, s{m+1}')
            a(f'v_xnor_b32 v{EL}, s{m}, v{t}')
            a(f'v_xnor_b32 v{EH}, s{m+1}, v{t}')
        else:
            a(f'v_bfi_b32 v{UL}, v{t}, 0, s{m}')
            a(f'v_bfi_b32 v{UH}, v{t}, 0, s{m+1}')
            a(f'v_and_or_b32 v{GL}, v{EL}, v{UL}, v{GL}')
            a(f'v_and_or_b32 v{GH}, v{EH}, v{UH}, v{GH}')
            a(f'v_bitop3_b32 v{EL}, v{EL}, s{m}, v{t} bitop3:0x90')
            a(f'v_bitop3_b32 v{EH}, v{EH}, s{m+1}, v{t} bitop3:0x90')
    a(f'v_bcnt_u32_b32 v71, v{GL}, 0')
    a(f'v_bcnt_u32_b32 v71, v{GH}, v71')
    a(f'v_mbcnt_lo_u32_b32 v71, v{EL}, v71')
    a(f'v_mbcnt_hi_u32_b32 v71, v{EH}, v71')
    a('v_bfe_i32 v74, v71, 3, 1')
    a('v_xor_b32 v74, v71, v74')
    a('v_and_b32 v74, 7, v74')
    a('v_lshrrev_b32 v71, 3, v71')
    a('v_lshl_add_u32 v71, v74, 3, v71')
    a('s_branch K2_PERM')
    a('K2_IDENT:')
    a(f'v_mul_u32_u24 v71, 52, v{l}\nv_lshrrev_b32 v71, 8, v71')
    a(f'v_mad_u32_u24 v71, v71, 3, v{l}')
    a(f'v_subrev_u32 v74, 40, v{l}')
    a('v_mul_u32_u24 v75, 86, v74\nv_lshrrev_b32 v75, 8, v75')
    a('v_mad_u32_u24 v75, v75, 5, v74')
    a('v_add_u32 v75, 5, v75')
    a('v_cndmask_b32 v71, v75, v71, vcc')
    a('K2_PERM:')
    a('v_lshlrev_b32 v71, 2, v71')
    a(f'v_lshl_or_b32 v74, v{l}, 16, v68')
    a('ds_permute_b32 v75, v71, v74')
    a('s_waitcnt lgkmcnt(0)')
    a('v_and_b32 v76, 0xffff, v75')
    a('v_mov_b32 v77, v76')
    a('s_nop 1')
    a('v_add_u32_dpp v77, v77, v77 row_shr:1 row_mask:0xf bank_mask:0xf')
    a('s_nop 1')
    a('v_add_u32_dpp v77, v77, v77 row_shr:2 row_mask:0xf bank_mask:0xf')
    a('s_nop 1')
    a('v_add_u32_dpp v77, v77, v77 row_shr:4 row_mask:0xf bank_mask:0xa')
    a(f's_mov_b32 s45, {16*NMAX}')
    a('v_cmp_lt_u32 vcc, s45, v77')
    a('v_sub_u32 v78, v77, v76')
    a(f's_lshl_b32 s46, s{S_W}, 3')
    a(f's_cmp_eq_u32 s{S_MODE}, 0\ns_cbranch_scc0 K2_GO')
    a('s_cmp_lg_u64 vcc, 0\ns_cbranch_scc1 K2_FALLBACK')
    a('K2_GO:')
    a('v_lshl_add_u32 v72, v78, 6, v72')
    a('v_lshl_add_u32 v73, v78, 2, v73')
    a('v_lshrrev_b32 v74, 16, v75')
    a('v_lshlrev_b32 v76, 3, v74')
    a(f'ds_write_b64 v76, v[72:73] offset:{c.OFF}')
    a('s_add_u32 s47, s46, 7')
    a(f'v_readlane_b32 s{S_N}, v77, s47')
    for q in range(5):
        if q: a('s_add_u32 s46, s46, 1')
        a(f'v_readlane_b32 s{S_NODE+q}, v74, s46')
    a('s_waitcnt lgkmcnt(0)')
    for i in range(NREC):
        a(f'v_cmp_lt_u32 vcc, {i}, v{V_MT}')
        a('s_and_b64 exec, exec, vcc')
        a('s_cbranch_execz K2_OF_DONE')
        a(f'ds_read_b64 v[{offp(i)}:{offp(i)+1}], v{la(i)} offset:{c.OFF}')
    a('K2_OF_DONE:')
    a('s_mov_b64 exec, -1')
    a(f's_add_u32 s{S_N}, s{S_N}, 15\ns_lshr_b32 s{S_N}, s{S_N}, 4\ns_max_u32 s{S_N}, s{S_N}, {NMIN}')
    a('s_mul_i32 s45, s2, 40')
    for q in range(5):
        a(f's_add_u32 s{S_NODE+q}, s{S_NODE+q}, s45\ns_lshl_b32 s{S_NODE+q}, s{S_NODE+q}, 10')
    a('s_waitcnt lgkmcnt(0)')
    for i in range(NREC):
        a(f'v_cmp_lt_u32 vcc, {i}, v{V_MT}')
        a('s_and_b64 exec, exec, vcc')
        a('s_cbranch_execz K2_SC_DONE')
        a(f'v_lshl_add_u32 v{offp(i)}, v{rec(i)+3}, 6, v{offp(i)}')
        a(f'v_lshl_add_u32 v{offp(i)+1}, v{rec(i)+3}, 2, v{offp(i)+1}')
        a(f'ds_write_b64 v{offp(i)}, v[{rec(i)}:{rec(i)+1}]')
        a(f'ds_write_b32 v{offp(i)+1}, v{rec(i)+2}')
    a('K2_SC_DONE:')
    a('s_mov_b64 exec, -1')
    a(f's_lshl_b32 s38, s{S_W}, 10\ns_add_u32 s38, s38, {c.TBL}')
    a(f'v_lshrrev_b32 v67, 3, v{l}')
    a('v_lshl_add_u32 v67, v67, 2, s38')
    a(f'v_bfe_u32 v68, v{l}, 2, 2')
    a(f'v_lshrrev_b32 v70, 5, v{l}')
    a('v_lshl_add_u32 v68, v70, 3, v68')
    a('v_lshlrev_b32 v68, 6, v68')
    a(f'v_bfe_u32 v69, v{l}, 4, 1')
    a('v_lshl_add_u32 v68, v69, 5, v68')
    a(f'v_and_b32 v69, 3, v{l}')
    a('v_lshl_add_u32 v68, v69, 3, v68')
    a(f's_add_u32 s38, s{S_RB}, {c.STG}')
    a('v_add_u32 v68, s38, v68')
    a(f's_mov_b32 s{S_SOFF}, 0\ns_mov_b32 s{S_RO}, 0')
    a(f's_mov_b32 s{SRD_X+2}, {XBYTES}\ns_mov_b32 s{SRD_X1+2}, {XBYTES+1024}')
    a(f's_mov_b32 m0, s{S_RB}')
    a('s_waitcnt lgkmcnt(0)')
    a('s_barrier')
    stp.full('scat_bar')
    if c.dbg == 'pro':
        dump_lds(a, c)
        return
    PI = 16
    for t in range(3):
        a(f'ds_read2_b32 v[{PI+2*t}:{PI+2*t+1}], v67 offset0:{16*t} offset1:{16*t+8}')
    for cc in range(9):
        t = cc + 3
        a(f'ds_read2_b32 v[{PA+2*cc}:{PA+2*cc+1}], v67 offset0:{16*t} offset1:{16*t+8}')
    a('s_waitcnt lgkmcnt(9)')
    for t in range(3):
        a(f'v_and_or_b32 v{PI+2*t}, v{PI+2*t}, s{S_MASK}, v{V_CHUNK}')
        a(f'v_and_or_b32 v{PI+2*t+1}, v{PI+2*t+1}, s{S_MASK}, v{V_CHUNK}')
        if t: a(f's_add_u32 m0, s{S_RB}, {2048*t}')
        if t: a('s_nop 0')
        a(f'buffer_load_dwordx4 v{PI+2*t}, s[{SRD_X}:{SRD_X+3}], s{S_SOFF} offen lds')
        a(f'buffer_load_dwordx4 v{PI+2*t+1}, s[{SRD_X1}:{SRD_X1+3}], s{S_SOFF} offen offset:1024 lds')
    a(f's_add_u32 m0, s{S_RB}, 6144')
    a('s_waitcnt lgkmcnt(0)')
    def coefread(s):
        a(f'ds_read_b64_tr_b16 v[{COEF+4*s}:{COEF+4*s+1}], v68 offset:{1024*s}')
        a(f'ds_read_b64_tr_b16 v[{COEF+4*s+2}:{COEF+4*s+3}], v68 offset:{1024*s+256}')
    for s in range(6):
        coefread(s)
    for i in range(18):
        a(f'v_and_or_b32 v{PA+i}, v{PA+i}, s{S_MASK}, v{V_CHUNK}')
    a('s_waitcnt lgkmcnt(3)')
    for s in range(6, 12):
        coefread(s)
    for i in range(6):
        a(f'v_add_u32 v{PA+2*(NMAX-3)+i}, 128, v{PI+i}')
    for n in range(NMIN, NMAX):
        a(f's_cmp_eq_u32 s{S_N}, {n}\ns_cbranch_scc0 K2_FX{n+1}')
        for i in range(6):
            a(f'v_add_u32 v{PA+2*(n-3)+i}, 128, v{PI+i}')
        if n < NMAX - 1:
            a('s_branch K2_FXD')
        a(f'K2_FX{n+1}:')
    a('K2_FXD:')

    def dmas(p, cc):
        if p == 7 and c.zero7 and NMIN - 3 <= cc <= NMAX - 3:
            a(f's_cmp_eq_u32 s{S_N}, {cc+3}')
            a(f's_cselect_b32 s{SRD_X+2}, 0, s{SRD_X+2}\ns_cselect_b32 s{SRD_X1+2}, 0, s{SRD_X1+2}')
        if 'nodma' not in c.abl:
            a(f'buffer_load_dwordx4 v{PA+2*cc}, s[{SRD_X}:{SRD_X+3}], s{S_SOFF} offen lds')
            a(f'buffer_load_dwordx4 v{PA+2*cc+1}, s[{SRD_X1}:{SRD_X1+3}], s{S_SOFF} offen offset:1024 lds')

    def ring_adv():
        a(f's_add_u32 m0, s{S_RB}, s{S_RO}')
        a(f's_add_u32 s{S_RO}, s{S_RO}, 2048\ns_and_b32 s{S_RO}, s{S_RO}, 0x1fff')

    def back(cc):
        if 'noback' in c.abl: return
        s = SET[cc & 1]
        for T in range(2):
            src = f'v[{AGG+16*T}:{AGG+16*T+15}]' if cc else '0'
            a(f'v_mfma_f32_32x32x16_bf16 v[{AGG+16*T}:{AGG+16*T+15}], v[{s+4*T}:{s+4*T+3}], v[{COEF+4*cc}:{COEF+4*cc+3}], {src}')

    def fwrite(p):
        if 'nofw' in c.abl: return
        for T in range(2):
            for i in range(8):
                a(f'v_cvt_pk_bf16_f32 v{G2B+8*T+i}, v{AGG+16*T+2*i}, v{AGG+16*T+2*i+1}')
        a(f's_mov_b64 exec, s[{S_FWM}:{S_FWM+1}]')
        for T in range(2):
            for u in range(2):
                a(f'ds_write_b128 v{V_FW}, v[{G2B+8*T+4*u}:{G2B+8*T+4*u+3}] offset:{T*3072 + u*1536}')
        a('s_mov_b64 exec, -1')
        a(f'v_{"add" if p % 2 == 0 else "subrev"}_u32 v{V_FW}, s{S_FT}, v{V_FW}')

    def flip(half):
        base = WREG + (0 if half == 0 else 24)
        for i in range(8):
            a(f'v_xor_b32 v{base+i}, 0x80008000, v{base+i}')

    def batches(pr):
        plan = g2_plan(pr, c)
        bt, cur = [], []
        for t in plan:
            if t[0] == 'flip':
                cur.append(t)
                continue
            if sum(1 for x in cur if x[0] == 'mm') == 4:
                bt.append(cur); cur = []
            cur.append(t)
        bt.append(cur)
        assert len(bt) == 6
        return bt

    def trreads(cc):
        if 'notr' in c.abl: return
        st = SET[cc & 1]
        a(f'ds_read_b64_tr_b16 v[{st}:{st+1}], v{V_R0}')
        a(f'ds_read_b64_tr_b16 v[{st+2}:{st+3}], v{V_R0} offset:512')
        a(f'ds_read_b64_tr_b16 v[{st+4}:{st+5}], v{V_R1}')
        a(f'ds_read_b64_tr_b16 v[{st+6}:{st+7}], v{V_R1} offset:512')

    def step(p, cc):
        g2 = p > 0 and 'nog2' not in c.abl
        bt = batches(p - 1) if p > 0 else None
        mark = len(a.L)
        a(f'v_add_u32 v{V_R0}, s{S_RO}, v{V_TRL0}')
        a(f'v_add_u32 v{V_R1}, s{S_RO}, v{V_TRL1}')
        extra = 4 if (p in (2, 3) and 1 <= cc <= 3) else 0
        if cc == 0: stp.issue()
        a(f's_waitcnt vmcnt({2*(R-2)+extra}) lgkmcnt(0)')
        if cc == 0: stp.save(f'ph{p}')
        if cc == B and 'nobar' not in c.abl:
            a('s_barrier')
        if c.dma_first: dmas(p, cc)
        trreads(cc)
        if not c.dma_first and cc == 0: dmas(p, cc)
        if cc == 0:
            if p in (2, 3):
                a(f's_add_u32 s37, s{S_WB}, {16384 if p == 2 else 12288}')
                a(f's_add_u32 s38, s{S_WB}, {8192 if p == 2 else 16384}')
                if p == 2:
                    wload(a, 0, 16, 37); wload(a, 1, 17, 37); wload(a, 2, 10, 38); wload(a, 3, 11, 38)
                else:
                    wload(a, 4, 14, 37); wload(a, 5, 15, 37); wload(a, 6, 18, 38); wload(a, 7, 19, 38)
            ring_adv()
            if p > 0:
                n = len(a.L) - mark + 1
                if n < 13:
                    a(f's_nop {12 - n}')
                fwrite(p - 1)
            return
        if cc == 1 and p >= 2:
            op = 'add' if p % 2 == 0 else 'subrev'
            a(f'v_{op}_u32 v{V_FRA}, s{S_FT}, v{V_FRA}')
            a(f'v_{op}_u32 v{V_FRB}, s{S_FT}, v{V_FRB}')
        def g2mm():
            if g2 and B + 1 <= cc <= B + 6:
                n = 0
                for t in bt[cc - B - 1]:
                    if t[0] == 'flip':
                        continue
                    a(f'v_mfma_f32_16x16x32_bf16 v[{t[4]}:{t[4]+3}], v[{t[3]}:{t[3]+3}], v[{G2B+4*n}:{G2B+4*n+3}], v[{t[4]}:{t[4]+3}]')
                    n += 1
        def g2rd():
            if g2 and B <= cc <= B + 5:
                n = 0
                for t in bt[cc - B]:
                    if t[0] == 'flip':
                        continue
                    a(f'ds_read_b128 v[{G2B+4*n}:{G2B+4*n+3}], v{t[1]} offset:{t[2]}')
                    n += 1
        if c.g2first:
            g2mm(); g2rd(); back(cc - 1)
        else:
            back(cc - 1); g2mm(); g2rd()
        if g2 and p - 1 >= 2 and cc == B + 3:
            flip((p - 1) & 1)
        if not c.dma_first: dmas(p, cc)
        ring_adv()

    for p in range(8):
        a(f'; ---------------- phase {p}')
        a(f'K2_PH{p}:')
        for cc in range(NMAX):
            step(p, cc)
            if NMIN - 1 <= cc:
                if cc < NMAX - 1:
                    a(f's_cmp_eq_u32 s{S_N}, {cc+1}\ns_cbranch_scc1 K2_X{p}_{cc}')
                else:
                    a('s_waitcnt lgkmcnt(0)')
                    back(cc)
                    a(f's_add_u32 s{S_SOFF}, s{S_SOFF}, 128')
                    a(f's_branch {"K2_PH%d" % (p+1) if p < 7 else "K2_TAIL"}')
        for cc in range(NMIN - 1, NMAX - 1):
            a(f'K2_X{p}_{cc}:')
            a('s_waitcnt lgkmcnt(0)')
            back(cc)
            a(f's_add_u32 s{S_SOFF}, s{S_SOFF}, 128')
            if not (p < 7 and cc == NMAX - 2):
                a(f's_branch {"K2_PH%d" % (p+1) if p < 7 else "K2_TAIL"}')
            elif p == 7:
                pass
    a('K2_TAIL:')
    stp.issue()
    a('s_nop 7\ns_nop 3')
    if c.stamp:
        a('s_waitcnt lgkmcnt(0)')
    stp.save('tail')
    fwrite(7)
    for op in ('add',):
        a(f'v_{op}_u32 v{V_FRA}, s{S_FT}, v{V_FRA}')
        a(f'v_{op}_u32 v{V_FRB}, s{S_FT}, v{V_FRB}')
    a('s_waitcnt vmcnt(0) lgkmcnt(0)')
    a('s_barrier')
    plan = g2_plan(7, c)
    regs = [COEF + 4 * i for i in range(12)] + [AGG + 4 * i for i in range(8)] + [SET[0] + 4 * i for i in range(4)]
    mm = [t for t in plan if t[0] == 'mm']
    fl = [i for i, t in enumerate(plan) if t[0] == 'flip'][0]
    def rd(n): a(f'ds_read_b128 v[{regs[n]}:{regs[n]+3}], v{mm[n][1]} offset:{mm[n][2]}')
    for n in range(12): rd(n)
    for n in range(24):
        if n == fl - 6:
            flip(1)
        a(f's_waitcnt lgkmcnt({11 if n < 12 else 23 - n})')
        t = mm[n]
        a(f'v_mfma_f32_16x16x32_bf16 v[{t[4]}:{t[4]+3}], v[{t[3]}:{t[3]+3}], v[{regs[n]}:{regs[n]+3}], v[{t[4]}:{t[4]+3}]')
        if n < 12: rd(12 + n)
    a(f'v_subrev_u32 v{V_FRA}, s{S_FT}, v{V_FRA}')
    a(f'v_subrev_u32 v{V_FRB}, s{S_FT}, v{V_FRB}')
    a(f's_cmp_eq_u32 s{S_MODE}, 0\ns_cbranch_scc1 K2_EPI')
    a(f's_cmp_lg_u32 s{S_MORE}, 0\ns_cbranch_scc0 K2_NEXTC')
    a(f's_add_u32 s{S_J0}, s{S_J0}, 20')
    a('s_branch K2_RELOAD')
    a('K2_NEXTC:')
    a(f's_mov_b32 s{S_J0}, 0')
    a(f's_add_u32 s{S_C0}, s{S_C0}, s{S_CN}')
    a(f's_cmp_ge_u32 s{S_C0}, {NCH}\ns_cbranch_scc1 K2_EPI')
    a('s_branch K2_RELOAD')
    a('K2_FALLBACK:')
    a(f's_mov_b32 s{S_MODE}, 1\ns_mov_b32 s{S_CN}, 9\ns_mov_b32 s{S_C0}, 0\ns_mov_b32 s{S_J0}, 0')
    a('K2_RELOAD:')
    a('s_waitcnt vmcnt(0) lgkmcnt(0)')
    a('s_barrier')
    a('v_lshrrev_b32 v61, 1, v0')
    a(f'v_add_u32 v61, s{S_C0}, v61')
    a('v_min_u32 v61, 255, v61')
    a('v_lshlrev_b32 v62, 10, v61')
    a(f'buffer_load_dword v63, v62, s[{SRD_WS}:{SRD_WS+3}], s{S_TG} offen')
    a('s_branch K2_ROUND')
    a('K2_EPI:')
    stp.full('epi')
    a('s_nop 7')
    a(f'v_and_b32 v12, 15, v{l}\nv_lshrrev_b32 v13, 4, v{l}')
    a('v_mul_u32_u24 v12, 1040, v12')
    a('v_lshl_add_u32 v12, v13, 3, v12')
    a(f's_lshl_b32 s37, s{S_W}, 5')
    a('v_add_u32 v12, s37, v12')
    a(f's_mul_i32 s37, s{S_W}, {5*1040}')
    a(f'v_add_u32 v13, s37, v{V_L16}')
    a('s_mov_b32 s45, 0xbfb8aa3b')
    for nt in range(3):
        g = 20 + 4 * nt
        for r in range(4):
            a(f'v_mul_f32 v{g+r}, s45, v{OUT + nt*4 + r}')
        for r in range(4):
            a(f'v_exp_f32 v{g+r}, v{g+r}')
        a('s_nop 0')
        for r in range(4):
            a(f'v_add_f32 v{g+r}, 1.0, v{g+r}')
        for r in range(4):
            a(f'v_rcp_f32 v{g+r}, v{g+r}')
    a('s_nop 0')
    tmp = 32
    for nt in range(3):
        g = 20 + 4 * nt
        for o in range(4):
            q = OUT + (o * 3 + nt) * 4
            if o:
                for r in range(4):
                    a(f'v_mul_f32 v{q+r}, v{q+r}, v{g+r}')
            a(f'v_cvt_pk_bf16_f32 v{tmp}, v{q}, v{q+1}')
            a(f'v_cvt_pk_bf16_f32 v{tmp+1}, v{q+2}, v{q+3}')
            a(f'ds_write_b64 v12, v[{tmp}:{tmp+1}] offset:{nt*16640 + o*256}')
            tmp += 2
    a('s_waitcnt lgkmcnt(0)')
    a('s_barrier')
    for q in range(5):
        a(f'ds_read_b128 v[{64+4*q}:{67+4*q}], v13 offset:{1040*q}')
    for q in range(5):
        a(f's_waitcnt lgkmcnt({4-q})')
        a(f'buffer_store_dwordx4 v[{64+4*q}:{67+4*q}], v{V_L16}, s[{SRD_OUT}:{SRD_OUT+3}], s{S_NODE+q} offen {c.osc}')
    stp.full('st_issued')
    if c.stamp:
        a('s_waitcnt vmcnt(0)')
        stp.full('end')
        a(f's_mov_b32 s{stp.base+len(stp.names)}, s{S_N}')
        stp.names.append('N')
        a(f's_mov_b32 s{stp.base+len(stp.names)}, s{S_MODE}')
        stp.names.append('mode')
        print('K2 stamps:', stp.names)
    stp.dump(34, WS_ST2, S_W, 8, 96)
    a('K2_END:')
    a('s_endpgm')


def dump_lds(a, c):
    n = (c.LDS + 8191) // 8192
    a('s_waitcnt lgkmcnt(0)\ns_barrier')
    a(f's_mul_i32 s36, s2, {n*8192}')
    a(f's_add_u32 s30, s34, {WS_DBG}\ns_addc_u32 s31, s35, 0')
    srd(a, 80, 30, 250 * n * 8192)
    a('v_lshlrev_b32 v60, 4, v0')
    for k in range(n):
        a(f'v_add_u32 v61, {k*8192}, v60')
        if (k + 1) * 8192 > c.LDS:
            a(f'v_min_u32 v61, {c.LDS-16}, v61')
        a('ds_read_b128 v[64:67], v61')
        a('s_waitcnt lgkmcnt(0)')
        a('buffer_store_dwordx4 v[64:67], v60, s[80:83], s36 offen')
        a('s_add_u32 s36, s36, 8192')
        a('s_nop 1')
    a('s_waitcnt vmcnt(0)')
    a('K2_END:')
    a('s_endpgm')


def build(**kw):
    c = Cfg(**kw)
    a = Asm()
    hdr = header()
    hdr.append(f'; @launch kernel={K1} grid=({gen2_k1.K1_GRID},1,1) block=(320,1,1) lds={gen2_k1.K1_LDS}')
    hdr.append(f'; @launch kernel={K2} grid=({NBIN},1,1) block=(512,1,1) lds={c.LDS}')
    a.L += hdr
    a.L.append('.amdgcn_target "amdgcn-amd-amdhsa--gfx950"')
    a.L.append('.text')
    gen_k2(a, c)
    gen2_k1.gen_k1(a, stamp=c.stamp, sc=c.k1sc)
    a.L.append('.section .rodata,"a"')
    a.L.append('.p2align 6')
    txt = a.text() + descriptor(K2, 256, 102) + '.p2align 6\n' + descriptor(K1, 72, 102 if c.stamp else 64)
    return txt, c


if __name__ == '__main__':
    kw = eval('dict(' + (sys.argv[2] if len(sys.argv) > 2 else '') + ')')
    txt, c = build(**kw)
    out = sys.argv[1]
    open(out, 'w').write(txt)
    print('written', out, 'LDS', c.LDS, 'lines', txt.count('\n'))
```

```python
import sys
from gen import Asm, srd, Stamp, descriptor, header, NAME, K2, K1
import gen2_k1
from gen2_k1 import NBIN, NCH, CHUNK, WS_REC, WS_TBL, WS_WF, OOB, XBYTES, WS_ST1, WS_ST2

WS_DBG = 0x1000000


class Cfg:
    def __init__(self, **kw):
        self.R = 4
        self.NMAX = 12
        self.NMIN = 9
        self.B = 2
        self.dma_first = True
        self.g2first = True
        self.stamp = False
        self.abl = ''
        self.dbg = None
        self.k1sc = 'sc0 sc1'
        self.osc = 'sc0 sc1'
        self.zero7 = True
        self.force_slow = False
        self.wpf = False
        self.l2pf = 0
        self.l2pos = 'rec'
        self.xwarm = 0
        for k, v in kw.items():
            assert hasattr(self, k), k
            setattr(self, k, v)
        self.AW = 18432
        self.STG = 6144
        self.FO = 8192
        self.TBL = 0
        self.CNT = self.TBL + 8192
        self.FLAG = self.CNT + 512
        self.OFF = self.CNT + 1024
        self.AB = 10240
        self.LDS = self.AB + 8 * self.AW
        assert self.LDS <= 163840


V_LANE, V_TRL0, V_TRL1, V_R0, V_R1, V_FW, V_FRA, V_FRB, V_CHUNK, V_L16 = 1, 2, 3, 4, 5, 6, 7, 8, 9, 10
SET = (16, 24)
G2B = 32
AGG = 48
OUT = 80
WREG = 128
COEF = 176
PA = 224
S_W = 3
SRD_X, SRD_X1, SRD_WS, SRD_OUT = 4, 8, 12, 16
S_N, S_SOFF, S_RO, S_RB, S_C0, S_CN, S_J0, S_MODE, S_MORE, S_TG = 20, 21, 22, 23, 24, 25, 26, 27, 28, 29
S_FWM = 42
S_WB = 44
S_NODE = 72
S_FT = 77
S_MASK = 78
S_PFR = 79
NREC = 10


def rec(i): return 16 + 4 * i
def la(i): return 56 + i
def offp(i): return COEF + 2 * i
V_MT = 66


def wslot(mat, Tp):
    return {(0, 0): 0, (0, 1): 1, (1, 0): 2, (1, 1): 3, (0, 2): 4, (0, 3): 5, (1, 2): 6, (1, 3): 7,
            (2, 0): 8, (2, 1): 9, (3, 0): 10, (3, 1): 11, (4, 0): 0, (4, 1): 1,
            (2, 2): 2, (2, 3): 3, (3, 2): 4, (3, 3): 5, (4, 2): 6, (4, 3): 7}[(mat, Tp)]


def g2_plan(pr, c):
    g, half = pr >> 1, pr & 1
    sign = {(1, 2): 1, (2, 0): 1, (0, 1): 1, (2, 1): -1, (1, 0): -1, (0, 2): -1}
    def group(pp, mat, o):
        out = []
        for T in range(2):
            for nt in range(3):
                Tp = 2 * half + T
                base = V_FRA if pp < 2 else V_FRB
                off = (pp & 1) * (c.AW + 32) + T * 3072 + nt * 256
                out.append(('mm', base, off, WREG + 4 * wslot(mat, Tp), OUT + (o * 3 + nt) * 4))
        return out
    if g == 0:
        lst = group(0, 0, 0)
        for pp in range(1, 4):
            lst += group(pp, 1, pp)
        return lst
    k = g - 1
    js = [j for j in range(3) if j != k]
    state = 1 if k % 2 == 0 else -1
    first = [j for j in js if sign[(j, k)] == state][0]
    second = [j for j in js if j != first][0]
    lst = group(1 + first, 4, 1 + (3 - first - k))
    lst += group(0, 2, 1 + k)
    lst += group(1 + k, 3, 0)
    lst += [('flip', half)]
    lst += group(1 + second, 4, 1 + (3 - second - k))
    return lst


def wload(a, slot, f, tmp):
    a(f'buffer_load_dwordx4 v[{WREG+4*slot}:{WREG+4*slot+3}], v{V_L16}, s[{SRD_WS}:{SRD_WS+3}], s{tmp} offen offset:{1024*(f&3)}')


def gen_k2(a, c):
    R, B, NMAX, NMIN, AW = c.R, c.B, c.NMAX, c.NMIN, c.AW
    assert R == 4
    stp = Stamp(a, c.stamp, 50, 52)
    l = V_LANE
    a(f'.globl {K2}\n.p2align 8\n.type {K2},@function\n{K2}:')
    a(f's_cmp_ge_u32 s2, {NBIN}\ns_cbranch_scc1 K2_END')
    a('s_load_dwordx2 s[30:31], s[0:1], 0')
    a('s_load_dwordx2 s[32:33], s[0:1], 72')
    a('s_load_dwordx2 s[34:35], s[0:1], 88')
    a('s_and_b32 s36, s2, 7\ns_lshr_b32 s37, s2, 3\ns_mul_i32 s38, s36, 31\ns_min_u32 s36, s36, 2')
    a(f's_mul_i32 s{S_PFR}, s37, 328')
    a('s_add_u32 s38, s38, s36\ns_add_u32 s2, s38, s37')
    a(f'v_and_b32 v{l}, 63, v0')
    a('v_lshrrev_b32 v60, 6, v0')
    a(f's_lshl_b32 s{S_TG}, s2, 2\ns_add_u32 s{S_TG}, s{S_TG}, {WS_TBL}')
    a(f'v_readfirstlane_b32 s{S_W}, v60')
    a(f's_mov_b32 s{S_C0}, 0\ns_mov_b32 s{S_CN}, {NCH}\ns_mov_b32 s{S_J0}, 0\ns_mov_b32 s{S_MODE}, 0')
    a('v_lshrrev_b32 v61, 1, v0')
    a('v_lshlrev_b32 v62, 10, v61')
    stp.issue()
    a('s_waitcnt lgkmcnt(0)')
    stp.save('start')
    srd(a, SRD_WS, 34, WS_WF + 160 * 1024)
    a(f'buffer_load_dword v63, v62, s[{SRD_WS}:{SRD_WS+3}], s{S_TG} offen')
    srd(a, SRD_X, 30, XBYTES)
    a(f's_sub_u32 s{SRD_X1}, s30, 1024\ns_subb_u32 s{SRD_X1+1}, s31, 0')
    a(f's_mov_b32 s{SRD_X1+2}, {XBYTES+1024}\ns_mov_b32 s{SRD_X1+3}, 0x20000')
    srd(a, SRD_OUT, 32, XBYTES)
    a(f's_mul_i32 s{S_WB}, s{S_W}, 20480\ns_add_u32 s{S_WB}, s{S_WB}, {WS_WF}')
    a(f's_mul_i32 s{S_RB}, s{S_W}, {AW}\ns_add_u32 s{S_RB}, s{S_RB}, {c.AB}')
    a(f's_mov_b32 s{S_FT}, {4*AW}')
    a(f's_mov_b32 s{S_MASK}, 0xfffffc00')
    a(f's_mov_b32 s{S_FWM}, 0x000fffff\ns_mov_b32 s{S_FWM+1}, 0x000fffff')
    a(f'v_lshlrev_b32 v{V_L16}, 4, v{l}')
    a(f'v_and_b32 v66, 7, v{l}')
    a(f'v_bfe_u32 v67, v{l}, 4, 1')
    a('v_lshlrev_b32 v68, 2, v67\nv_xor_b32 v68, v68, v66')
    a(f'v_lshlrev_b32 v{V_CHUNK}, 4, v68')
    a(f'v_bfe_u32 v68, v{l}, 2, 2')
    a(f'v_and_b32 v69, 3, v{l}')
    a(f'v_lshrrev_b32 v70, 5, v{l}')
    a('v_lshl_add_u32 v71, v70, 3, v68')
    a('v_lshlrev_b32 v71, 7, v71')
    a('v_lshrrev_b32 v72, 1, v69')
    a('v_lshl_add_u32 v72, v67, 1, v72')
    a('v_lshrrev_b32 v73, 1, v68\nv_lshlrev_b32 v73, 2, v73')
    a('v_xor_b32 v72, v72, v73')
    a('v_lshl_add_u32 v71, v72, 4, v71')
    a('v_and_b32 v73, 1, v69')
    a('v_lshl_add_u32 v71, v73, 3, v71')
    a(f'v_add_u32 v{V_TRL0}, s{S_RB}, v71')
    a('v_xor_b32 v71, 64, v71')
    a(f'v_add_u32 v{V_TRL1}, s{S_RB}, v71')
    a(f's_mul_i32 s39, s{S_W}, 80\ns_add_u32 s39, s39, {c.AB + c.FO}')
    a(f's_mov_b32 s40, {AW+32}')
    a('v_mul_lo_u32 v72, v69, s40')
    a('v_mul_u32_u24 v73, 768, v70')
    a('v_add3_u32 v72, v72, v73, s39')
    a(f'v_bfe_u32 v73, v{l}, 2, 3')
    a(f'v_lshl_add_u32 v{V_FW}, v73, 4, v72')
    a(f'v_lshrrev_b32 v72, 4, v{l}\nv_mul_u32_u24 v72, 768, v72')
    a(f'v_and_b32 v73, 15, v{l}')
    a('v_lshl_add_u32 v72, v73, 4, v72')
    a(f'v_add_u32 v{V_FRA}, {c.AB + c.FO}, v72')
    a(f'v_add_u32 v{V_FRB}, {c.AB + c.FO + 2*(AW+32)}, v72')
    for i in range(0, 48, 2):
        a(f'v_mov_b64 v[{OUT+i}:{OUT+i+1}], 0')
    a('K2_ROUND:')
    a('v_mov_b64 v[68:69], 0\nv_mov_b64 v[70:71], 0')
    a(f'v_mov_b32 v72, {OOB}\nv_mov_b32 v73, {OOB}\nv_mov_b32 v74, {OOB}\nv_mov_b32 v75, {OOB}')
    a(f'v_add_u32 v76, s{S_RB}, v{V_L16}')
    for k in range(12):
        a(f'ds_write_b128 v76, v[68:71] offset:{c.STG + 1024*k}')
    a(f's_lshl_b32 s38, s{S_W}, 10\ns_add_u32 s38, s38, {c.TBL}')
    a(f'v_add_u32 v77, s38, v{V_L16}')
    a('ds_write_b128 v77, v[72:75]')
    a(f's_cmp_lg_u32 s{S_W}, 0\ns_cbranch_scc1 K2_I1')
    a(f'v_add_u32 v77, {c.CNT}, v{V_L16}')
    a('ds_write_b128 v77, v[68:71]')
    a('K2_I1:')
    a('s_waitcnt vmcnt(0)')
    stp.full('tbl_arr')
    a('v_lshrrev_b32 v61, 1, v0')
    a('v_and_b32 v62, 1, v0')
    a(f'v_add_u32 v64, s{S_C0}, v61')
    a(f'v_cmp_gt_u32 vcc, s{S_CN}, v61')
    a(f's_mov_b32 s45, {NCH}')
    a('v_cmp_gt_u32 s[40:41], s45, v64')
    a('s_nop 1')
    a('s_and_b64 vcc, vcc, s[40:41]')
    a('v_cndmask_b32 v63, 0, v63, vcc')
    a('v_lshrrev_b32 v65, 16, v63')
    a('v_and_b32 v67, 0xffff, v63')
    a(f'v_subrev_u32 v65, s{S_J0}, v65')
    a('v_max_i32 v65, 0, v65')
    a(f'v_min_u32 v{V_MT}, 20, v65')
    a(f'v_sub_u32 v{V_MT}, v{V_MT}, v62')
    a(f'v_add_u32 v{V_MT}, 1, v{V_MT}')
    a(f'v_lshrrev_b32 v{V_MT}, 1, v{V_MT}')
    a(f'v_mul_u32_u24 v64, {CHUNK}, v64')
    a(f'v_add3_u32 v64, v64, v67, s{S_J0}')
    a('v_add_u32 v64, v64, v62')
    a('v_mul_u32_u24 v64, 12, v64')
    for i in range(NREC):
        a(f'v_cmp_lt_u32 vcc, {i}, v{V_MT}')
        a('s_and_b64 exec, exec, vcc')
        a('s_cbranch_execz K2_LD_DONE')
        a(f'buffer_load_dwordx3 v[{rec(i)}:{rec(i)+2}], v64, s[{SRD_WS}:{SRD_WS+3}], 0 offen offset:{24*i}')
    a('K2_LD_DONE:')
    a('s_mov_b64 exec, -1')
    a(f's_add_u32 s37, s{S_WB}, 4096\ns_add_u32 s38, s{S_WB}, 8192\ns_add_u32 s39, s{S_WB}, 12288')
    for slot, f in enumerate((0, 1, 4, 5, 2, 3, 6, 7, 8, 9, 12, 13)):
        wload(a, slot, f, (S_WB, 37, 38, 39)[f >> 2])
    nx = 0
    if c.wpf:
        a(f'v_lshrrev_b32 v11, 4, v{l}\nv_min_u32 v11, 1, v11\nv_lshlrev_b32 v11, 11, v11')
        a(f'v_lshl_add_u32 v11, v{l}, 7, v11')
        a(f's_add_u32 s37, s{S_WB}, 10240')
        a(f'buffer_load_dword v11, v11, s[{SRD_WS}:{SRD_WS+3}], s37 offen')
        nx += 1
    if c.xwarm:
        a(f's_mul_i32 s37, s2, 320\ns_mul_i32 s38, s{S_W}, 40\ns_add_u32 s37, s37, s38\ns_lshl_b32 s37, s37, 7')
        a(f'v_lshlrev_b32 v14, 7, v{l}')
        a(f's_mov_b32 s{SRD_X+2}, {XBYTES}')
        a('s_bfm_b64 exec, 40, 0')
        a(f'buffer_load_dword v14, v14, s[{SRD_X}:{SRD_X+3}], s37 offen')
        a('s_mov_b64 exec, -1')
        nx += 1
    a('v_mov_b32 v68, 1')
    a('s_waitcnt lgkmcnt(0)')
    a('s_barrier')
    a('v_cmp_lt_u32 vcc, 20, v65')
    a('s_and_saveexec_b64 s[40:41], vcc')
    a('s_cbranch_execz K2_NOMORE')
    a(f'v_mov_b32 v69, {c.FLAG}')
    a('ds_write_b32 v69, v68')
    a('K2_NOMORE:')
    a('s_mov_b64 exec, s[40:41]')
    a(f's_waitcnt vmcnt({12+nx})')
    stp.full('rec_arr')
    def l2prefetch():
        a(f's_mul_i32 s37, s{S_W}, 41\ns_add_u32 s37, s37, s{S_PFR}')
        a(f'v_add_u32 v14, s37, v{l}\nv_lshlrev_b32 v14, 10, v14')
        a(f's_mov_b32 s{SRD_X+2}, {XBYTES}')
        a('s_bfm_b64 exec, 41, 0')
        for k in range(c.l2pf):
            a(f's_mov_b32 s37, {128*k}')
            a(f'buffer_load_dword v{(11, 15, 12, 13)[k]}, v14, s[{SRD_X}:{SRD_X+3}], s37 offen')
        a('s_mov_b64 exec, -1')
    if c.l2pf and c.l2pos == 'rec':
        l2prefetch()
    for i in range(NREC):
        a(f'v_cmp_lt_u32 vcc, {i}, v{V_MT}')
        a('s_and_b64 exec, exec, vcc')
        a('s_cbranch_execz K2_RK_DONE')
        a(f'v_and_b32 v{la(i)}, 0x3f8, v{rec(i)+2}')
        a(f'ds_add_rtn_u32 v{rec(i)+3}, v{la(i)}, v68 offset:{c.CNT}')
    a('K2_RK_DONE:')
    a('s_mov_b64 exec, -1')
    a(f'v_lshrrev_b32 v70, 3, v{l}')
    a(f'v_and_b32 v71, 7, v{l}')
    a(f's_mov_b32 s45, {AW}')
    a('v_mul_lo_u32 v72, v70, s45')
    a('v_lshl_add_u32 v72, v71, 3, v72')
    a(f'v_add_u32 v72, {c.AB + c.STG}, v72')
    a('v_lshlrev_b32 v73, 10, v70')
    a(f'v_add_u32 v73, {c.TBL}, v73')
    a(f'v_lshlrev_b32 v67, 3, v{l}')
    a(f'v_mov_b32 v69, {c.FLAG}')
    a('s_waitcnt lgkmcnt(0)')
    a('s_barrier')
    stp.full('rank_bar')
    if c.l2pf and c.l2pos == 'rank':
        l2prefetch()
    a(f'ds_read_b32 v68, v67 offset:{c.CNT}')
    a('ds_read_b32 v70, v69')
    a(f'v_cmp_gt_u32 vcc, 40, v{l}')
    a(f's_cmp_eq_u32 s{S_MODE}, 0')
    a('s_waitcnt lgkmcnt(0)')
    a(f'v_readfirstlane_b32 s{S_MORE}, v70')
    a('s_cbranch_scc0 K2_IDENT')
    if c.force_slow:
        a('s_branch K2_FALLBACK')
    a(f's_cmp_lg_u32 s{S_MORE}, 0\ns_cbranch_scc1 K2_FALLBACK')
    T0 = 196
    a('v_med3_u32 v71, v68, 17, 47')
    a('v_subrev_u32 v71, 16, v71')
    a('v_cndmask_b32 v71, 0, v71, vcc')
    for b in range(5):
        a(f'v_bfe_i32 v{T0+b}, v71, {b}, 1')
    MS = [36, 38, 40, 46, 48]
    for b in range(5):
        a(f'v_cmp_ne_u32_e64 s[{MS[b]}:{MS[b]+1}], 0, v{T0+b}')
    a('s_nop 1')
    GL, GH, EL, EH, UL, UH = 201, 202, 203, 204, 205, 206
    for b in (4, 3, 2, 1, 0):
        m, t = MS[b], T0 + b
        if b == 4:
            a(f'v_bfi_b32 v{GL}, v{t}, 0, s{m}')
            a(f'v_bfi_b32 v{GH}, v{t}, 0, s{m+1}')
            a(f'v_xnor_b32 v{EL}, s{m}, v{t}')
            a(f'v_xnor_b32 v{EH}, s{m+1}, v{t}')
        else:
            a(f'v_bfi_b32 v{UL}, v{t}, 0, s{m}')
            a(f'v_bfi_b32 v{UH}, v{t}, 0, s{m+1}')
            a(f'v_and_or_b32 v{GL}, v{EL}, v{UL}, v{GL}')
            a(f'v_and_or_b32 v{GH}, v{EH}, v{UH}, v{GH}')
            a(f'v_bitop3_b32 v{EL}, v{EL}, s{m}, v{t} bitop3:0x90')
            a(f'v_bitop3_b32 v{EH}, v{EH}, s{m+1}, v{t} bitop3:0x90')
    a(f'v_bcnt_u32_b32 v71, v{GL}, 0')
    a(f'v_bcnt_u32_b32 v71, v{GH}, v71')
    a(f'v_mbcnt_lo_u32_b32 v71, v{EL}, v71')
    a(f'v_mbcnt_hi_u32_b32 v71, v{EH}, v71')
    a('v_bfe_i32 v74, v71, 3, 1')
    a('v_xor_b32 v74, v71, v74')
    a('v_and_b32 v74, 7, v74')
    a('v_lshrrev_b32 v71, 3, v71')
    a('v_lshl_add_u32 v71, v74, 3, v71')
    a('s_branch K2_PERM')
    a('K2_IDENT:')
    a(f'v_mul_u32_u24 v71, 52, v{l}\nv_lshrrev_b32 v71, 8, v71')
    a(f'v_mad_u32_u24 v71, v71, 3, v{l}')
    a(f'v_subrev_u32 v74, 40, v{l}')
    a('v_mul_u32_u24 v75, 86, v74\nv_lshrrev_b32 v75, 8, v75')
    a('v_mad_u32_u24 v75, v75, 5, v74')
    a('v_add_u32 v75, 5, v75')
    a('v_cndmask_b32 v71, v75, v71, vcc')
    a('K2_PERM:')
    a('v_lshlrev_b32 v71, 2, v71')
    a(f'v_lshl_or_b32 v74, v{l}, 16, v68')
    a('ds_permute_b32 v75, v71, v74')
    a('s_waitcnt lgkmcnt(0)')
    a('v_and_b32 v76, 0xffff, v75')
    a('v_mov_b32 v77, v76')
    a('s_nop 1')
    a('v_add_u32_dpp v77, v77, v77 row_shr:1 row_mask:0xf bank_mask:0xf')
    a('s_nop 1')
    a('v_add_u32_dpp v77, v77, v77 row_shr:2 row_mask:0xf bank_mask:0xf')
    a('s_nop 1')
    a('v_add_u32_dpp v77, v77, v77 row_shr:4 row_mask:0xf bank_mask:0xa')
    a(f's_mov_b32 s45, {16*NMAX}')
    a('v_cmp_lt_u32 vcc, s45, v77')
    a('v_sub_u32 v78, v77, v76')
    a(f's_lshl_b32 s46, s{S_W}, 3')
    a(f's_cmp_eq_u32 s{S_MODE}, 0\ns_cbranch_scc0 K2_GO')
    a('s_cmp_lg_u64 vcc, 0\ns_cbranch_scc1 K2_FALLBACK')
    a('K2_GO:')
    a('v_lshl_add_u32 v72, v78, 6, v72')
    a('v_lshl_add_u32 v73, v78, 2, v73')
    a('v_lshrrev_b32 v74, 16, v75')
    a('v_lshlrev_b32 v76, 3, v74')
    a(f'ds_write_b64 v76, v[72:73] offset:{c.OFF}')
    a('s_add_u32 s47, s46, 7')
    a(f'v_readlane_b32 s{S_N}, v77, s47')
    for q in range(5):
        if q: a('s_add_u32 s46, s46, 1')
        a(f'v_readlane_b32 s{S_NODE+q}, v74, s46')
    a('s_waitcnt lgkmcnt(0)')
    for i in range(NREC):
        a(f'v_cmp_lt_u32 vcc, {i}, v{V_MT}')
        a('s_and_b64 exec, exec, vcc')
        a('s_cbranch_execz K2_OF_DONE')
        a(f'ds_read_b64 v[{offp(i)}:{offp(i)+1}], v{la(i)} offset:{c.OFF}')
    a('K2_OF_DONE:')
    a('s_mov_b64 exec, -1')
    a(f's_add_u32 s{S_N}, s{S_N}, 15\ns_lshr_b32 s{S_N}, s{S_N}, 4\ns_max_u32 s{S_N}, s{S_N}, {NMIN}')
    a('s_mul_i32 s45, s2, 40')
    for q in range(5):
        a(f's_add_u32 s{S_NODE+q}, s{S_NODE+q}, s45\ns_lshl_b32 s{S_NODE+q}, s{S_NODE+q}, 10')
    a('s_waitcnt lgkmcnt(0)')
    for i in range(NREC):
        a(f'v_cmp_lt_u32 vcc, {i}, v{V_MT}')
        a('s_and_b64 exec, exec, vcc')
        a('s_cbranch_execz K2_SC_DONE')
        a(f'v_lshl_add_u32 v{offp(i)}, v{rec(i)+3}, 6, v{offp(i)}')
        a(f'v_lshl_add_u32 v{offp(i)+1}, v{rec(i)+3}, 2, v{offp(i)+1}')
        a(f'ds_write_b64 v{offp(i)}, v[{rec(i)}:{rec(i)+1}]')
        a(f'ds_write_b32 v{offp(i)+1}, v{rec(i)+2}')
    a('K2_SC_DONE:')
    a('s_mov_b64 exec, -1')
    a(f's_lshl_b32 s38, s{S_W}, 10\ns_add_u32 s38, s38, {c.TBL}')
    a(f'v_lshrrev_b32 v67, 3, v{l}')
    a('v_lshl_add_u32 v67, v67, 2, s38')
    a(f'v_bfe_u32 v68, v{l}, 2, 2')
    a(f'v_lshrrev_b32 v70, 5, v{l}')
    a('v_lshl_add_u32 v68, v70, 3, v68')
    a('v_lshlrev_b32 v68, 6, v68')
    a(f'v_bfe_u32 v69, v{l}, 4, 1')
    a('v_lshl_add_u32 v68, v69, 5, v68')
    a(f'v_and_b32 v69, 3, v{l}')
    a('v_lshl_add_u32 v68, v69, 3, v68')
    a(f's_add_u32 s38, s{S_RB}, {c.STG}')
    a('v_add_u32 v68, s38, v68')
    a(f's_mov_b32 s{S_SOFF}, 0\ns_mov_b32 s{S_RO}, 0')
    a(f's_mov_b32 s{SRD_X+2}, {XBYTES}\ns_mov_b32 s{SRD_X1+2}, {XBYTES+1024}')
    a(f's_mov_b32 m0, s{S_RB}')
    a('s_waitcnt lgkmcnt(0)')
    a('s_barrier')
    stp.full('scat_bar')
    if c.dbg == 'pro':
        dump_lds(a, c)
        return
    PI = 16
    for t in range(3):
        a(f'ds_read2_b32 v[{PI+2*t}:{PI+2*t+1}], v67 offset0:{16*t} offset1:{16*t+8}')
    for cc in range(9):
        t = cc + 3
        a(f'ds_read2_b32 v[{PA+2*cc}:{PA+2*cc+1}], v67 offset0:{16*t} offset1:{16*t+8}')
    a('s_waitcnt lgkmcnt(9)')
    for t in range(3):
        a(f'v_and_or_b32 v{PI+2*t}, v{PI+2*t}, s{S_MASK}, v{V_CHUNK}')
        a(f'v_and_or_b32 v{PI+2*t+1}, v{PI+2*t+1}, s{S_MASK}, v{V_CHUNK}')
        if t: a(f's_add_u32 m0, s{S_RB}, {2048*t}')
        if t: a('s_nop 0')
        a(f'buffer_load_dwordx4 v{PI+2*t}, s[{SRD_X}:{SRD_X+3}], s{S_SOFF} offen lds')
        a(f'buffer_load_dwordx4 v{PI+2*t+1}, s[{SRD_X1}:{SRD_X1+3}], s{S_SOFF} offen offset:1024 lds')
    a(f's_add_u32 m0, s{S_RB}, 6144')
    a('s_waitcnt lgkmcnt(0)')
    def coefread(s):
        a(f'ds_read_b64_tr_b16 v[{COEF+4*s}:{COEF+4*s+1}], v68 offset:{1024*s}')
        a(f'ds_read_b64_tr_b16 v[{COEF+4*s+2}:{COEF+4*s+3}], v68 offset:{1024*s+256}')
    for s in range(6):
        coefread(s)
    for i in range(18):
        a(f'v_and_or_b32 v{PA+i}, v{PA+i}, s{S_MASK}, v{V_CHUNK}')
    a('s_waitcnt lgkmcnt(3)')
    for s in range(6, 12):
        coefread(s)
    for i in range(6):
        a(f'v_add_u32 v{PA+2*(NMAX-3)+i}, 128, v{PI+i}')
    for n in range(NMIN, NMAX):
        a(f's_cmp_eq_u32 s{S_N}, {n}\ns_cbranch_scc0 K2_FX{n+1}')
        for i in range(6):
            a(f'v_add_u32 v{PA+2*(n-3)+i}, 128, v{PI+i}')
        if n < NMAX - 1:
            a('s_branch K2_FXD')
        a(f'K2_FX{n+1}:')
    a('K2_FXD:')

    def dmas(p, cc):
        if p == 7 and c.zero7 and NMIN - 3 <= cc <= NMAX - 3:
            a(f's_cmp_eq_u32 s{S_N}, {cc+3}')
            a(f's_cselect_b32 s{SRD_X+2}, 0, s{SRD_X+2}\ns_cselect_b32 s{SRD_X1+2}, 0, s{SRD_X1+2}')
        if 'nodma' not in c.abl:
            a(f'buffer_load_dwordx4 v{PA+2*cc}, s[{SRD_X}:{SRD_X+3}], s{S_SOFF} offen lds')
            a(f'buffer_load_dwordx4 v{PA+2*cc+1}, s[{SRD_X1}:{SRD_X1+3}], s{S_SOFF} offen offset:1024 lds')

    def ring_adv():
        a(f's_add_u32 m0, s{S_RB}, s{S_RO}')
        a(f's_add_u32 s{S_RO}, s{S_RO}, 2048\ns_and_b32 s{S_RO}, s{S_RO}, 0x1fff')

    def back(cc):
        if 'noback' in c.abl: return
        s = SET[cc & 1]
        for T in range(2):
            src = f'v[{AGG+16*T}:{AGG+16*T+15}]' if cc else '0'
            a(f'v_mfma_f32_32x32x16_bf16 v[{AGG+16*T}:{AGG+16*T+15}], v[{s+4*T}:{s+4*T+3}], v[{COEF+4*cc}:{COEF+4*cc+3}], {src}')

    def fwrite(p):
        if 'nofw' in c.abl: return
        for T in range(2):
            for i in range(8):
                a(f'v_cvt_pk_bf16_f32 v{G2B+8*T+i}, v{AGG+16*T+2*i}, v{AGG+16*T+2*i+1}')
        a(f's_mov_b64 exec, s[{S_FWM}:{S_FWM+1}]')
        for T in range(2):
            for u in range(2):
                a(f'ds_write_b128 v{V_FW}, v[{G2B+8*T+4*u}:{G2B+8*T+4*u+3}] offset:{T*3072 + u*1536}')
        a('s_mov_b64 exec, -1')
        a(f'v_{"add" if p % 2 == 0 else "subrev"}_u32 v{V_FW}, s{S_FT}, v{V_FW}')

    def flip(half):
        base = WREG + (0 if half == 0 else 24)
        for i in range(8):
            a(f'v_xor_b32 v{base+i}, 0x80008000, v{base+i}')

    def batches(pr):
        plan = g2_plan(pr, c)
        bt, cur = [], []
        for t in plan:
            if t[0] == 'flip':
                cur.append(t)
                continue
            if sum(1 for x in cur if x[0] == 'mm') == 4:
                bt.append(cur); cur = []
            cur.append(t)
        bt.append(cur)
        assert len(bt) == 6
        return bt

    def trreads(cc):
        if 'notr' in c.abl: return
        st = SET[cc & 1]
        a(f'ds_read_b64_tr_b16 v[{st}:{st+1}], v{V_R0}')
        a(f'ds_read_b64_tr_b16 v[{st+2}:{st+3}], v{V_R0} offset:512')
        a(f'ds_read_b64_tr_b16 v[{st+4}:{st+5}], v{V_R1}')
        a(f'ds_read_b64_tr_b16 v[{st+6}:{st+7}], v{V_R1} offset:512')

    def step(p, cc):
        g2 = p > 0 and 'nog2' not in c.abl
        bt = batches(p - 1) if p > 0 else None
        mark = len(a.L)
        a(f'v_add_u32 v{V_R0}, s{S_RO}, v{V_TRL0}')
        a(f'v_add_u32 v{V_R1}, s{S_RO}, v{V_TRL1}')
        wl = p in (2, 3) and f'now{p}' not in c.abl
        extra = 4 if (wl and 1 <= cc <= 3) else 0
        if cc == 0: stp.issue()
        a(f's_waitcnt vmcnt({2*(R-2)+extra}) lgkmcnt(0)')
        if cc == 0: stp.save(f'ph{p}')
        if cc == B and 'nobar' not in c.abl:
            a('s_barrier')
        if c.dma_first: dmas(p, cc)
        trreads(cc)
        if not c.dma_first and cc == 0: dmas(p, cc)
        if cc == 0:
            if wl:
                a(f's_add_u32 s37, s{S_WB}, {16384 if p == 2 else 12288}')
                a(f's_add_u32 s38, s{S_WB}, {8192 if p == 2 else 16384}')
                if p == 2:
                    wload(a, 0, 16, 37); wload(a, 1, 17, 37); wload(a, 2, 10, 38); wload(a, 3, 11, 38)
                else:
                    wload(a, 4, 14, 37); wload(a, 5, 15, 37); wload(a, 6, 18, 38); wload(a, 7, 19, 38)
            ring_adv()
            if p > 0:
                n = len(a.L) - mark + 1
                if n < 13:
                    a(f's_nop {12 - n}')
                fwrite(p - 1)
            return
        if cc == 1 and p >= 2:
            op = 'add' if p % 2 == 0 else 'subrev'
            a(f'v_{op}_u32 v{V_FRA}, s{S_FT}, v{V_FRA}')
            a(f'v_{op}_u32 v{V_FRB}, s{S_FT}, v{V_FRB}')
        def g2mm():
            if g2 and B + 1 <= cc <= B + 6:
                n = 0
                for t in bt[cc - B - 1]:
                    if t[0] == 'flip':
                        continue
                    a(f'v_mfma_f32_16x16x32_bf16 v[{t[4]}:{t[4]+3}], v[{t[3]}:{t[3]+3}], v[{G2B+4*n}:{G2B+4*n+3}], v[{t[4]}:{t[4]+3}]')
                    n += 1
        def g2rd():
            if g2 and B <= cc <= B + 5:
                n = 0
                for t in bt[cc - B]:
                    if t[0] == 'flip':
                        continue
                    a(f'ds_read_b128 v[{G2B+4*n}:{G2B+4*n+3}], v{t[1]} offset:{t[2]}')
                    n += 1
        if c.g2first:
            g2mm(); g2rd(); back(cc - 1)
        else:
            back(cc - 1); g2mm(); g2rd()
        if g2 and p - 1 >= 2 and cc == B + 3 and 'noflip' not in c.abl:
            flip((p - 1) & 1)
        if not c.dma_first: dmas(p, cc)
        ring_adv()

    for p in range(8):
        a(f'; ---------------- phase {p}')
        a(f'K2_PH{p}:')
        for cc in range(NMAX):
            step(p, cc)
            if NMIN - 1 <= cc:
                if cc < NMAX - 1:
                    a(f's_cmp_eq_u32 s{S_N}, {cc+1}\ns_cbranch_scc1 K2_X{p}_{cc}')
                else:
                    a('s_waitcnt lgkmcnt(0)')
                    back(cc)
                    a(f's_add_u32 s{S_SOFF}, s{S_SOFF}, 128')
                    a(f's_branch {"K2_PH%d" % (p+1) if p < 7 else "K2_TAIL"}')
        for cc in range(NMIN - 1, NMAX - 1):
            a(f'K2_X{p}_{cc}:')
            a('s_waitcnt lgkmcnt(0)')
            back(cc)
            a(f's_add_u32 s{S_SOFF}, s{S_SOFF}, 128')
            if not (p < 7 and cc == NMAX - 2):
                a(f's_branch {"K2_PH%d" % (p+1) if p < 7 else "K2_TAIL"}')
            elif p == 7:
                pass
    a('K2_TAIL:')
    stp.issue()
    a('s_nop 7\ns_nop 3')
    if c.stamp:
        a('s_waitcnt lgkmcnt(0)')
    stp.save('tail')
    fwrite(7)
    for op in ('add',):
        a(f'v_{op}_u32 v{V_FRA}, s{S_FT}, v{V_FRA}')
        a(f'v_{op}_u32 v{V_FRB}, s{S_FT}, v{V_FRB}')
    a('s_waitcnt vmcnt(0) lgkmcnt(0)')
    a('s_barrier')
    plan = g2_plan(7, c)
    regs = [COEF + 4 * i for i in range(12)] + [AGG + 4 * i for i in range(8)] + [SET[0] + 4 * i for i in range(4)]
    mm = [t for t in plan if t[0] == 'mm']
    fl = [i for i, t in enumerate(plan) if t[0] == 'flip'][0]
    def rd(n): a(f'ds_read_b128 v[{regs[n]}:{regs[n]+3}], v{mm[n][1]} offset:{mm[n][2]}')
    for n in range(12): rd(n)
    for n in range(24):
        if n == fl - 6:
            flip(1)
        a(f's_waitcnt lgkmcnt({11 if n < 12 else 23 - n})')
        t = mm[n]
        a(f'v_mfma_f32_16x16x32_bf16 v[{t[4]}:{t[4]+3}], v[{t[3]}:{t[3]+3}], v[{regs[n]}:{regs[n]+3}], v[{t[4]}:{t[4]+3}]')
        if n < 12: rd(12 + n)
    a(f'v_subrev_u32 v{V_FRA}, s{S_FT}, v{V_FRA}')
    a(f'v_subrev_u32 v{V_FRB}, s{S_FT}, v{V_FRB}')
    a(f's_cmp_eq_u32 s{S_MODE}, 0\ns_cbranch_scc1 K2_EPI')
    a(f's_cmp_lg_u32 s{S_MORE}, 0\ns_cbranch_scc0 K2_NEXTC')
    a(f's_add_u32 s{S_J0}, s{S_J0}, 20')
    a('s_branch K2_RELOAD')
    a('K2_NEXTC:')
    a(f's_mov_b32 s{S_J0}, 0')
    a(f's_add_u32 s{S_C0}, s{S_C0}, s{S_CN}')
    a(f's_cmp_ge_u32 s{S_C0}, {NCH}\ns_cbranch_scc1 K2_EPI')
    a('s_branch K2_RELOAD')
    a('K2_FALLBACK:')
    a(f's_mov_b32 s{S_MODE}, 1\ns_mov_b32 s{S_CN}, 9\ns_mov_b32 s{S_C0}, 0\ns_mov_b32 s{S_J0}, 0')
    a('K2_RELOAD:')
    a('s_waitcnt vmcnt(0) lgkmcnt(0)')
    a('s_barrier')
    a('v_lshrrev_b32 v61, 1, v0')
    a(f'v_add_u32 v61, s{S_C0}, v61')
    a('v_min_u32 v61, 255, v61')
    a('v_lshlrev_b32 v62, 10, v61')
    a(f'buffer_load_dword v63, v62, s[{SRD_WS}:{SRD_WS+3}], s{S_TG} offen')
    a('s_branch K2_ROUND')
    a('K2_EPI:')
    stp.full('epi')
    a('s_nop 7')
    a(f'v_and_b32 v12, 15, v{l}\nv_lshrrev_b32 v13, 4, v{l}')
    a('v_mul_u32_u24 v12, 1040, v12')
    a('v_lshl_add_u32 v12, v13, 3, v12')
    a(f's_lshl_b32 s37, s{S_W}, 5')
    a('v_add_u32 v12, s37, v12')
    a(f's_mul_i32 s37, s{S_W}, {5*1040}')
    a(f'v_add_u32 v13, s37, v{V_L16}')
    a('s_mov_b32 s45, 0xbfb8aa3b')
    for nt in range(3):
        g = 20 + 4 * nt
        for r in range(4):
            a(f'v_mul_f32 v{g+r}, s45, v{OUT + nt*4 + r}')
        for r in range(4):
            a(f'v_exp_f32 v{g+r}, v{g+r}')
        a('s_nop 0')
        for r in range(4):
            a(f'v_add_f32 v{g+r}, 1.0, v{g+r}')
        for r in range(4):
            a(f'v_rcp_f32 v{g+r}, v{g+r}')
    a('s_nop 0')
    tmp = 32
    for nt in range(3):
        g = 20 + 4 * nt
        for o in range(4):
            q = OUT + (o * 3 + nt) * 4
            if o:
                for r in range(4):
                    a(f'v_mul_f32 v{q+r}, v{q+r}, v{g+r}')
            a(f'v_cvt_pk_bf16_f32 v{tmp}, v{q}, v{q+1}')
            a(f'v_cvt_pk_bf16_f32 v{tmp+1}, v{q+2}, v{q+3}')
            a(f'ds_write_b64 v12, v[{tmp}:{tmp+1}] offset:{nt*16640 + o*256}')
            tmp += 2
    a('s_waitcnt lgkmcnt(0)')
    a('s_barrier')
    for q in range(5):
        a(f'ds_read_b128 v[{64+4*q}:{67+4*q}], v13 offset:{1040*q}')
    for q in range(5):
        a(f's_waitcnt lgkmcnt({4-q})')
        a(f'buffer_store_dwordx4 v[{64+4*q}:{67+4*q}], v{V_L16}, s[{SRD_OUT}:{SRD_OUT+3}], s{S_NODE+q} offen {c.osc}')
    stp.full('st_issued')
    if c.stamp:
        a('s_waitcnt vmcnt(0)')
        stp.full('end')
        a(f's_mov_b32 s{stp.base+len(stp.names)}, s{S_N}')
        stp.names.append('N')
        a(f's_mov_b32 s{stp.base+len(stp.names)}, s{S_MODE}')
        stp.names.append('mode')
        print('K2 stamps:', stp.names)
    stp.dump(34, WS_ST2, S_W, 8, 96)
    a('K2_END:')
    a('s_endpgm')


def dump_lds(a, c):
    n = (c.LDS + 8191) // 8192
    a('s_waitcnt lgkmcnt(0)\ns_barrier')
    a(f's_mul_i32 s36, s2, {n*8192}')
    a(f's_add_u32 s30, s34, {WS_DBG}\ns_addc_u32 s31, s35, 0')
    srd(a, 80, 30, 250 * n * 8192)
    a('v_lshlrev_b32 v60, 4, v0')
    for k in range(n):
        a(f'v_add_u32 v61, {k*8192}, v60')
        if (k + 1) * 8192 > c.LDS:
            a(f'v_min_u32 v61, {c.LDS-16}, v61')
        a('ds_read_b128 v[64:67], v61')
        a('s_waitcnt lgkmcnt(0)')
        a('buffer_store_dwordx4 v[64:67], v60, s[80:83], s36 offen')
        a('s_add_u32 s36, s36, 8192')
        a('s_nop 1')
    a('s_waitcnt vmcnt(0)')
    a('K2_END:')
    a('s_endpgm')


def build(**kw):
    c = Cfg(**kw)
    a = Asm()
    hdr = header()
    hdr.append(f'; @launch kernel={K1} grid=({gen2_k1.K1_GRID},1,1) block=(320,1,1) lds={gen2_k1.K1_LDS}')
    hdr.append(f'; @launch kernel={K2} grid=({NBIN},1,1) block=(512,1,1) lds={c.LDS}')
    a.L += hdr
    a.L.append('.amdgcn_target "amdgcn-amd-amdhsa--gfx950"')
    a.L.append('.text')
    gen_k2(a, c)
    gen2_k1.gen_k1(a, stamp=c.stamp, sc=c.k1sc)
    a.L.append('.section .rodata,"a"')
    a.L.append('.p2align 6')
    txt = a.text() + descriptor(K2, 256, 102) + '.p2align 6\n' + descriptor(K1, 72, 102 if c.stamp else 64)
    return txt, c


if __name__ == '__main__':
    kw = eval('dict(' + (sys.argv[2] if len(sys.argv) > 2 else '') + ')')
    txt, c = build(**kw)
    out = sys.argv[1]
    open(out, 'w').write(txt)
    print('written', out, 'LDS', c.LDS, 'lines', txt.count('\n'))
```

```python
from gen import Asm, srd, Stamp, descriptor, header, NAME, K2, K1

NBIN = 250
NCH = 250
CHUNK = 1280
WS_REC = 0
WS_TBL = 0x400000
WS_WF = 0x480000
OOB = 0x7F000000
XBYTES = 10240000
WS_ST1 = 0x900000
WS_ST2 = 0xA00000
K1_GRID = NCH + 32
K1_LDS = 2048 + CHUNK * 12


def gen_k1(a, stamp=False, sc='sc0 sc1', old=False, pf=0):
    st = Stamp(a, stamp, 62, 64)
    HIST, OFF, STG = 0, 1024, 2048
    a(f'.globl {K1}\n.p2align 8\n.type {K1},@function\n{K1}:')
    a(f's_cmp_ge_u32 s2, {K1_GRID}\ns_cbranch_scc1 K1_END')
    a('s_load_dwordx4 s[4:7], s[0:1], 8')
    a('s_load_dwordx4 s[8:11], s[0:1], 24')
    a('s_load_dwordx2 s[12:13], s[0:1], 88')
    if pf:
        a('s_load_dwordx2 s[44:45], s[0:1], 0')
        a('s_lshr_b32 s56, s2, 3\ns_mul_i32 s56, s56, 320')
        a('v_add_u32 v68, s56, v0\nv_lshlrev_b32 v68, 10, v68')
    def prefetch():
        if not pf: return
        srd(a, 44, 44, XBYTES)
        for k in range(pf):
            a(f'buffer_load_dword v{69+k}, v68, s[44:47], 0 offen offset:{128*k}')
    st.full('start')
    a('v_lshrrev_b32 v1, 6, v0')
    a(f's_cmp_ge_u32 s2, {NCH}\ns_cbranch_scc1 K1_FOLD')
    a('v_readfirstlane_b32 s3, v1')
    a(f's_mul_i32 s14, s2, {CHUNK}')
    a('v_lshlrev_b32 v1, 2, v0')
    a('v_add_u32 v1, s14, v1')
    a('v_lshlrev_b32 v2, 2, v1')
    a('v_mul_u32_u24 v3, 6, v1')
    a('v_lshlrev_b32 v40, 1, v1')
    a('s_waitcnt lgkmcnt(0)')
    srd(a, 16, 10, 1280000)
    a('buffer_load_dwordx4 v[4:7], v2, s[16:19], 0 offen')
    srd(a, 20, 8, 1280000)
    a('buffer_load_dwordx4 v[8:11], v2, s[20:23], 0 offen')
    srd(a, 24, 4, 1920000)
    a('buffer_load_dwordx4 v[12:15], v3, s[24:27], 0 offen')
    a('buffer_load_dwordx2 v[16:17], v3, s[24:27], 0 offen offset:16')
    srd(a, 28, 6, 640000)
    a('buffer_load_dwordx2 v[18:19], v40, s[28:31], 0 offen')
    prefetch()
    srd(a, 32, 12, 320000 * 12, WS_REC)
    srd(a, 36, 12, NCH * 1024, WS_TBL)
    a('s_cmp_lg_u32 s3, 0\ns_cbranch_scc1 K1_NOZ')
    a('v_mov_b32 v44, 0\nv_mov_b32 v45, 0\nv_mov_b32 v46, 0\nv_mov_b32 v47, 0')
    a('v_lshlrev_b32 v41, 4, v0')
    a(f'ds_write_b128 v41, v[44:47] offset:{HIST}')
    a('s_waitcnt lgkmcnt(0)')
    a('K1_NOZ:')
    a('s_barrier')
    a('s_mov_b32 s40, -40')
    a('v_mov_b32 v42, 1')
    a(f's_mov_b32 s41, {STG}')
    a(f's_waitcnt vmcnt({4+pf})')
    st.full('dst_arr')
    for i in range(4):
        a(f'v_mul_u32_u24 v{48+i}, 52429, v{4+i}')
    for i in range(4):
        a(f'v_lshrrev_b32 v{48+i}, 21, v{48+i}')
    for i in range(4):
        a(f'v_mad_i32_i24 v{52+i}, v{48+i}, s40, v{4+i}')
        a(f'v_lshlrev_b32 v{48+i}, 2, v{48+i}')
    for i in range(4):
        a(f'ds_add_rtn_u32 v{56+i}, v{48+i}, v42 offset:{HIST}')
    if old:
        for i in range(4):
            a(f'v_mul_u32_u24 v{60+i}, 52, v{52+i}')
        for i in range(4):
            a(f'v_lshrrev_b32 v{60+i}, 8, v{60+i}')
        for i in range(4):
            a(f'v_mad_u32_u24 v{52+i}, v{60+i}, 3, v{52+i}')
    D0, D1, D2 = (0, 1, 2) if old else (2, 0, 1)
    a(f's_waitcnt vmcnt({3+pf})')
    for i in range(4):
        a(f'v_lshlrev_b32 v{60+i}, 10, v{8+i}')
        a(f'v_lshl_or_b32 v{20+D0+4*i}, v{52+i}, {24 if old else 3}, v{60+i}')
    a(f's_waitcnt vmcnt({pf})')
    a('v_lshlrev_b32 v60, 16, v18\nv_and_b32 v61, 0xffff0000, v18')
    a('v_lshlrev_b32 v62, 16, v19\nv_and_b32 v63, 0xffff0000, v19')
    ysrc = [[(12, 0), (12, 1), (13, 0)], [(13, 1), (14, 0), (14, 1)],
            [(15, 0), (15, 1), (16, 0)], [(16, 1), (17, 0), (17, 1)]]
    for i in range(4):
        for k in range(3):
            r, hi = ysrc[i][k]
            if hi:
                a(f'v_and_b32 v{64+k}, 0xffff0000, v{r}')
            else:
                a(f'v_lshlrev_b32 v{64+k}, 16, v{r}')
        for k in range(3):
            a(f'v_mul_f32 v{64+k}, v{60+i}, v{64+k}')
        a(f'v_cvt_pk_bf16_f32 v{20+D1+4*i}, v{60+i}, v64')
        a(f'v_cvt_pk_bf16_f32 v{20+D2+4*i}, v65, v66')
    a('s_waitcnt lgkmcnt(0)')
    st.full('rec_ready')
    a('s_barrier')
    a('v_and_b32 v41, 63, v0')
    a('v_lshlrev_b32 v43, 4, v41')
    a(f'ds_read_b128 v[4:7], v43 offset:{HIST}')
    a('s_waitcnt lgkmcnt(0)')
    a('v_add_u32 v8, v4, v5')
    a('v_add_u32 v9, v8, v6')
    a('v_add_u32 v10, v9, v7')
    a('v_mov_b32 v11, v10')
    for sh in (1, 2, 4, 8):
        a('s_nop 1')
        a(f'v_add_u32_dpp v11, v11, v11 row_shr:{sh} row_mask:0xf bank_mask:0xf')
    a('s_nop 1')
    a('v_add_u32_dpp v11, v11, v11 row_bcast:15 row_mask:0xa bank_mask:0xf')
    a('s_nop 1')
    a('v_add_u32_dpp v11, v11, v11 row_bcast:31 row_mask:0xc bank_mask:0xf')
    a('v_sub_u32 v12, v11, v10')
    a('v_add_u32 v13, v12, v4')
    a('v_add_u32 v14, v12, v8')
    a('v_add_u32 v15, v12, v9')
    a(f'ds_write_b128 v43, v[12:15] offset:{OFF}')
    for i in range(4):
        a(f'ds_read_b32 v{60+i}, v{48+i} offset:{OFF}')
    a('s_cmp_lg_u32 s3, 0\ns_cbranch_scc1 K1_NOT')
    a('s_lshl_b32 s15, s2, 10')
    for i in range(4):
        a(f'v_lshl_or_b32 v{8+i}, v{4+i}, 16, v{12+i}')
    a(f'buffer_store_dwordx4 v[8:11], v43, s[36:39], s15 offen {sc}')
    a('K1_NOT:')
    a('s_waitcnt lgkmcnt(0)')
    for i in range(4):
        a(f'v_add_u32 v{60+i}, v{60+i}, v{56+i}')
        a(f'v_mad_u32_u24 v{60+i}, v{60+i}, 12, s41')
    for i in range(4):
        a(f'ds_write2_b32 v{60+i}, v{20+4*i}, v{21+4*i} offset0:0 offset1:1')
        a(f'ds_write_b32 v{60+i}, v{22+4*i} offset:8')
    a('v_lshlrev_b32 v2, 4, v0')
    a(f's_mul_i32 s15, s2, {CHUNK*12}')
    a('s_add_u32 s42, s15, 5120\ns_add_u32 s43, s15, 10240')
    a('s_waitcnt lgkmcnt(0)')
    a('s_barrier')
    for k in range(3):
        a(f'ds_read_b128 v[{4+4*k}:{7+4*k}], v2 offset:{STG + 5120*k}')
    for k, sr in enumerate(('s15', 's42', 's43')):
        a(f's_waitcnt lgkmcnt({2-k})')
        a(f'buffer_store_dwordx4 v[{4+4*k}:{7+4*k}], v2, s[32:35], {sr} offen {sc}')
    st.full('st_issued')
    if stamp:
        a('s_waitcnt vmcnt(0)')
        st.full('end')
        st.dump(12, WS_ST1, 3, 8, 44)
    a('s_endpgm')
    a('K1_FOLD:')
    a('v_readfirstlane_b32 s3, v1')
    a('s_load_dwordx2 s[18:19], s[0:1], 40')
    a('s_load_dwordx4 s[20:23], s[0:1], 48')
    a('v_and_b32 v1, 63, v0')
    a(f's_sub_u32 s14, s2, {NCH}\ns_mul_i32 s14, s14, 5\ns_add_u32 s14, s14, s3')
    a('s_mul_i32 s24, s14, 3277\ns_lshr_b32 s24, s24, 16')
    a('s_mul_i32 s25, s24, 20\ns_sub_u32 s25, s14, s25')
    a('s_lshr_b32 s26, s25, 2\ns_and_b32 s27, s25, 3')
    a('s_waitcnt lgkmcnt(0)')
    srd(a, 48, 18, 1280)
    a('s_cmp_eq_u32 s26, 0\ns_cselect_b32 s28, 1, 0')
    a('s_cmp_eq_u32 s26, 3\ns_cselect_b32 s28, 1, s28')
    a('s_cmp_eq_u32 s28, 1')
    a('s_cselect_b32 s52, s20, s22\ns_cselect_b32 s53, s21, s23')
    a('s_mov_b32 s54, 98304')
    a('s_cselect_b32 s54, 65536, s54')
    a('s_mov_b32 s55, 0x20000')
    a('s_lshr_b32 s29, s26, 1')
    a('s_mov_b32 s30, 0')
    a('s_cmp_eq_u32 s26, 1\ns_cselect_b32 s30, 2, s30')
    a('s_cmp_eq_u32 s26, 2\ns_cselect_b32 s30, 3, s30')
    a('s_cmp_eq_u32 s26, 3\ns_cselect_b32 s30, 1, s30')
    a('s_cmp_eq_u32 s26, 4\ns_cselect_b32 s30, 4, s30')
    srd(a, 56, 12, 160 * 1024, WS_WF)
    a('v_lshrrev_b32 v2, 4, v1\nv_and_b32 v3, 15, v1')
    a('v_lshrrev_b32 v4, 1, v2\nv_and_b32 v5, 1, v2')
    a('v_lshlrev_b32 v4, 4, v4\nv_lshl_add_u32 v4, v5, 2, v4')
    a('s_lshl_b32 s31, s27, 5')
    a('v_add_u32 v4, s31, v4')
    a('s_lshl_b32 s31, s30, 8')
    a('v_lshl_add_u32 v5, v4, 1, s31')
    a('s_lshl_b32 s31, s29, 15')
    a('s_lshl_b32 s33, s24, 5\ns_add_u32 s31, s31, s33')
    a('v_lshlrev_b32 v6, 8, v4')
    a('v_lshl_add_u32 v6, v3, 1, v6')
    a('v_add_u32 v6, s31, v6')
    a('buffer_load_dwordx2 v[8:9], v5, s[48:51], 0 offen')
    a('buffer_load_dwordx2 v[10:11], v5, s[48:51], 0 offen offset:16')
    for j in range(8):
        a(f'buffer_load_ushort v{12+j}, v6, s[52:55], 0 offen offset:{(j&3)*256 + (j>>2)*2048}')
    if pf:
        srd(a, 60, 44, XBYTES)
        for k in range(pf):
            a(f'buffer_load_dword v{69+k}, v68, s[60:63], 0 offen offset:{128*k}')
    a(f's_waitcnt vmcnt({pf})')
    for j in range(8):
        r = 8 + (j >> 1)
        if j & 1:
            a(f'v_and_b32 v{40+j}, 0xffff0000, v{r}')
        else:
            a(f'v_lshlrev_b32 v{40+j}, 16, v{r}')
    for j in range(8):
        a(f'v_lshlrev_b32 v{12+j}, 16, v{12+j}')
    for j in range(8):
        a(f'v_mul_f32 v{40+j}, v{40+j}, v{12+j}')
    for j in range(4):
        a(f'v_cvt_pk_bf16_f32 v{48+j}, v{40+2*j}, v{41+2*j}')
    a('s_lshl_b32 s35, s14, 10')
    a('v_lshlrev_b32 v7, 4, v1')
    a(f'buffer_store_dwordx4 v[48:51], v7, s[56:59], s35 offen {sc}')
    if stamp:
        st.names = ['start']
        st.full('hend')
        a('s_waitcnt vmcnt(0)')
    a('K1_END:')
    a('s_endpgm')
```

```python
import sys
from gen import Asm, srd, Stamp, descriptor, header, NAME, K2, K1
import gen2_k1
from gen2_k1 import NBIN, NCH, CHUNK, WS_REC, WS_TBL, WS_WF, OOB, XBYTES, WS_ST1, WS_ST2

WS_DBG = 0x1000000


class Cfg:
    def __init__(self, **kw):
        self.R = 4
        self.NMAX = 12
        self.NMIN = 9
        self.B = 2
        self.dma_first = True
        self.g2first = True
        self.stamp = False
        self.abl = ''
        self.dbg = None
        self.k1sc = 'sc0 sc1'
        self.osc = 'sc0 sc1'
        self.zero7 = True
        self.force_slow = False
        self.wpf = False
        self.stepst = -1
        self.l2pf = 0
        self.l2pos = 'rec'
        self.l2plan = None
        self.order = (0, 1, 2, 3, 4, 5, 6, 7)
        self.soff0 = 0
        self.k1pf = 0
        self.loopdbg = False
        self.xwarm = 0
        for k, v in kw.items():
            assert hasattr(self, k), k
            setattr(self, k, v)
        self.AW = 18432
        self.STG = 6144
        self.FO = 8192
        self.TBL = 0
        self.CNT = self.TBL + 8192
        self.FLAG = self.CNT + 512
        self.OFF = self.CNT + 1024
        self.AB = 10240
        self.LDS = self.AB + 8 * self.AW
        assert self.LDS <= 163840


V_LANE, V_TRL0, V_TRL1, V_R0, V_R1, V_FW, V_FRA, V_FRB, V_CHUNK, V_L16 = 1, 2, 3, 4, 5, 6, 7, 8, 9, 10
SET = (16, 24)
G2B = 32
AGG = 48
OUT = 80
WREG = 128
COEF = 176
PA = 224
S_W = 3
SRD_X, SRD_X1, SRD_WS, SRD_OUT = 4, 8, 12, 16
S_N, S_SOFF, S_RO, S_RB, S_C0, S_CN, S_J0, S_MODE, S_MORE, S_TG = 20, 21, 22, 23, 24, 25, 26, 27, 28, 29
S_FWM = 42
S_WB = 44
S_NODE = 72
S_FT = 77
S_MASK = 78
S_PFR = 79
NREC = 10


def rec(i): return 16 + 4 * i
def la(i): return 56 + i
def offp(i): return COEF + 2 * i
V_MT = 66


G0LAST = False
def wslot(mat, Tp):
    if G0LAST:
        return {(4, 0): 0, (4, 1): 1, (2, 0): 2, (2, 1): 3, (3, 0): 4, (3, 1): 5,
                (4, 2): 6, (4, 3): 7, (2, 2): 8, (2, 3): 9, (3, 2): 10, (3, 3): 11,
                (0, 0): 0, (0, 1): 1, (1, 0): 2, (1, 1): 3, (0, 2): 6, (0, 3): 7, (1, 2): 8, (1, 3): 9}[(mat, Tp)]
    return {(0, 0): 0, (0, 1): 1, (1, 0): 2, (1, 1): 3, (0, 2): 4, (0, 3): 5, (1, 2): 6, (1, 3): 7,
            (2, 0): 8, (2, 1): 9, (3, 0): 10, (3, 1): 11, (4, 0): 0, (4, 1): 1,
            (2, 2): 2, (2, 3): 3, (3, 2): 4, (3, 3): 5, (4, 2): 6, (4, 3): 7}[(mat, Tp)]


def g2_plan(pr, c):
    g, half = c.order[pr] >> 1, c.order[pr] & 1
    sign = {(1, 2): 1, (2, 0): 1, (0, 1): 1, (2, 1): -1, (1, 0): -1, (0, 2): -1}
    def group(pp, mat, o):
        out = []
        for T in range(2):
            for nt in range(3):
                Tp = 2 * half + T
                base = V_FRA if pp < 2 else V_FRB
                off = (pp & 1) * (c.AW + 32) + T * 3072 + nt * 256
                out.append(('mm', base, off, WREG + 4 * wslot(mat, Tp), OUT + (o * 3 + nt) * 4))
        return out
    if g == 0:
        lst = group(0, 0, 0)
        for pp in range(1, 4):
            lst += group(pp, 1, pp)
        return lst
    k = g - 1
    js = [j for j in range(3) if j != k]
    state = 1 if k % 2 == 0 else -1
    first = [j for j in js if sign[(j, k)] == state][0]
    second = [j for j in js if j != first][0]
    lst = group(1 + first, 4, 1 + (3 - first - k))
    lst += group(0, 2, 1 + k)
    lst += group(1 + k, 3, 0)
    lst += [('flip', half)]
    lst += group(1 + second, 4, 1 + (3 - second - k))
    return lst


def wload(a, slot, f, tmp):
    a(f'buffer_load_dwordx4 v[{WREG+4*slot}:{WREG+4*slot+3}], v{V_L16}, s[{SRD_WS}:{SRD_WS+3}], s{tmp} offen offset:{1024*(f&3)}')


def gen_k2(a, c):
    global G0LAST
    R, B, NMAX, NMIN, AW = c.R, c.B, c.NMAX, c.NMIN, c.AW
    G0LAST = tuple(c.order) != (0, 1, 2, 3, 4, 5, 6, 7)
    if G0LAST:
        assert sorted(c.order[:2]) == [2, 3] and tuple(c.order[2:]) == (4, 5, 6, 7, 0, 1) and not c.wpf and not c.soff0
    assert R == 4
    stp = Stamp(a, c.stamp, 50, 52)
    plan_pf = c.l2plan if c.l2plan is not None else [(c.l2pos, k, 0, 41) for k in range(c.l2pf)]
    pfregs = [11, 15, 12, 13]
    def l2at(pos):
        todo = [t for t in plan_pf if t[0] == pos]
        if not todo: return 0
        a(f's_mul_i32 s37, s{S_W}, 41\ns_add_u32 s37, s37, s{S_PFR}')
        a(f'v_add_u32 v14, s37, v{V_LANE}\nv_lshlrev_b32 v14, 10, v14')
        a(f's_mov_b32 s{SRD_X+2}, {XBYTES}')
        for (_, k, lo, hi) in todo:
            a(f's_bfm_b64 exec, {hi-lo}, {lo}')
            a(f's_mov_b32 s37, {128*k}')
            a(f'buffer_load_dword v{pfregs.pop(0)}, v14, s[{SRD_X}:{SRD_X+3}], s37 offen')
        a('s_mov_b64 exec, -1')
        return len(todo)
    l = V_LANE
    a(f'.globl {K2}\n.p2align 8\n.type {K2},@function\n{K2}:')
    a(f's_cmp_ge_u32 s2, {NBIN}\ns_cbranch_scc1 K2_END')
    a('s_load_dwordx2 s[30:31], s[0:1], 0')
    a('s_load_dwordx2 s[32:33], s[0:1], 72')
    a('s_load_dwordx2 s[34:35], s[0:1], 88')
    a('s_and_b32 s36, s2, 7\ns_lshr_b32 s37, s2, 3\ns_mul_i32 s38, s36, 31\ns_min_u32 s36, s36, 2')
    a(f's_mul_i32 s{S_PFR}, s37, 328')
    a('s_add_u32 s38, s38, s36\ns_add_u32 s2, s38, s37')
    a(f'v_and_b32 v{l}, 63, v0')
    a('v_lshrrev_b32 v60, 6, v0')
    a(f's_lshl_b32 s{S_TG}, s2, 2\ns_add_u32 s{S_TG}, s{S_TG}, {WS_TBL}')
    a(f'v_readfirstlane_b32 s{S_W}, v60')
    a(f's_mov_b32 s{S_C0}, 0\ns_mov_b32 s{S_CN}, {NCH}\ns_mov_b32 s{S_J0}, 0\ns_mov_b32 s{S_MODE}, 0')
    a('v_lshrrev_b32 v61, 1, v0')
    a('v_lshlrev_b32 v62, 10, v61')
    stp.issue()
    if c.stamp: a('s_memtime s[86:87]')
    a('s_waitcnt lgkmcnt(0)')
    stp.save('start')
    srd(a, SRD_WS, 34, WS_WF + 160 * 1024)
    a(f'buffer_load_dword v63, v62, s[{SRD_WS}:{SRD_WS+3}], s{S_TG} offen')
    srd(a, SRD_X, 30, XBYTES)
    nstart = l2at('start')
    a(f's_sub_u32 s{SRD_X1}, s30, 1024\ns_subb_u32 s{SRD_X1+1}, s31, 0')
    a(f's_mov_b32 s{SRD_X1+2}, {XBYTES+1024}\ns_mov_b32 s{SRD_X1+3}, 0x20000')
    srd(a, SRD_OUT, 32, XBYTES)
    a(f's_mul_i32 s{S_WB}, s{S_W}, 20480\ns_add_u32 s{S_WB}, s{S_WB}, {WS_WF}')
    a(f's_mul_i32 s{S_RB}, s{S_W}, {AW}\ns_add_u32 s{S_RB}, s{S_RB}, {c.AB}')
    a(f's_mov_b32 s{S_FT}, {4*AW}')
    a(f's_mov_b32 s{S_MASK}, 0xfffffc00')
    a(f's_mov_b32 s{S_FWM}, 0x000fffff\ns_mov_b32 s{S_FWM+1}, 0x000fffff')
    a(f'v_lshlrev_b32 v{V_L16}, 4, v{l}')
    a(f'v_and_b32 v66, 7, v{l}')
    a(f'v_bfe_u32 v67, v{l}, 4, 1')
    a('v_lshlrev_b32 v68, 2, v67\nv_xor_b32 v68, v68, v66')
    a(f'v_lshlrev_b32 v{V_CHUNK}, 4, v68')
    a(f'v_bfe_u32 v68, v{l}, 2, 2')
    a(f'v_and_b32 v69, 3, v{l}')
    a(f'v_lshrrev_b32 v70, 5, v{l}')
    a('v_lshl_add_u32 v71, v70, 3, v68')
    a('v_lshlrev_b32 v71, 7, v71')
    a('v_lshrrev_b32 v72, 1, v69')
    a('v_lshl_add_u32 v72, v67, 1, v72')
    a('v_lshrrev_b32 v73, 1, v68\nv_lshlrev_b32 v73, 2, v73')
    a('v_xor_b32 v72, v72, v73')
    a('v_lshl_add_u32 v71, v72, 4, v71')
    a('v_and_b32 v73, 1, v69')
    a('v_lshl_add_u32 v71, v73, 3, v71')
    a(f'v_add_u32 v{V_TRL0}, s{S_RB}, v71')
    a('v_xor_b32 v71, 64, v71')
    a(f'v_add_u32 v{V_TRL1}, s{S_RB}, v71')
    a(f's_mul_i32 s39, s{S_W}, 80\ns_add_u32 s39, s39, {c.AB + c.FO}')
    a(f's_mov_b32 s40, {AW+32}')
    a('v_mul_lo_u32 v72, v69, s40')
    a('v_mul_u32_u24 v73, 768, v70')
    a('v_add3_u32 v72, v72, v73, s39')
    a(f'v_bfe_u32 v73, v{l}, 2, 3')
    a(f'v_lshl_add_u32 v{V_FW}, v73, 4, v72')
    a(f'v_lshrrev_b32 v72, 4, v{l}\nv_mul_u32_u24 v72, 768, v72')
    a(f'v_and_b32 v73, 15, v{l}')
    a('v_lshl_add_u32 v72, v73, 4, v72')
    a(f'v_add_u32 v{V_FRA}, {c.AB + c.FO}, v72')
    a(f'v_add_u32 v{V_FRB}, {c.AB + c.FO + 2*(AW+32)}, v72')
    for i in range(0, 48, 2):
        a(f'v_mov_b64 v[{OUT+i}:{OUT+i+1}], 0')
    a('K2_ROUND:')
    a('v_mov_b64 v[68:69], 0\nv_mov_b64 v[70:71], 0')
    a(f'v_mov_b32 v72, {OOB}\nv_mov_b32 v73, {OOB}\nv_mov_b32 v74, {OOB}\nv_mov_b32 v75, {OOB}')
    a(f'v_add_u32 v76, s{S_RB}, v{V_L16}')
    for k in range(12):
        a(f'ds_write_b128 v76, v[68:71] offset:{c.STG + 1024*k}')
    a(f's_lshl_b32 s38, s{S_W}, 10\ns_add_u32 s38, s38, {c.TBL}')
    a(f'v_add_u32 v77, s38, v{V_L16}')
    a('ds_write_b128 v77, v[72:75]')
    a(f's_cmp_lg_u32 s{S_W}, 0\ns_cbranch_scc1 K2_I1')
    a(f'v_add_u32 v77, {c.CNT}, v{V_L16}')
    a('ds_write_b128 v77, v[68:71]')
    a('K2_I1:')
    a('s_waitcnt vmcnt(0)' if not nstart else f's_waitcnt vmcnt({nstart})')
    stp.full('tbl_arr')
    l2at('tbl')
    a('v_lshrrev_b32 v61, 1, v0')
    a('v_and_b32 v62, 1, v0')
    a(f'v_add_u32 v64, s{S_C0}, v61')
    a(f'v_cmp_gt_u32 vcc, s{S_CN}, v61')
    a(f's_mov_b32 s45, {NCH}')
    a('v_cmp_gt_u32 s[40:41], s45, v64')
    a('s_nop 1')
    a('s_and_b64 vcc, vcc, s[40:41]')
    a('v_cndmask_b32 v63, 0, v63, vcc')
    a('v_lshrrev_b32 v65, 16, v63')
    a('v_and_b32 v67, 0xffff, v63')
    a(f'v_subrev_u32 v65, s{S_J0}, v65')
    a('v_max_i32 v65, 0, v65')
    a(f'v_min_u32 v{V_MT}, 20, v65')
    a(f'v_sub_u32 v{V_MT}, v{V_MT}, v62')
    a(f'v_add_u32 v{V_MT}, 1, v{V_MT}')
    a(f'v_lshrrev_b32 v{V_MT}, 1, v{V_MT}')
    a(f'v_mul_u32_u24 v64, {CHUNK}, v64')
    a(f'v_add3_u32 v64, v64, v67, s{S_J0}')
    a('v_add_u32 v64, v64, v62')
    a('v_mul_u32_u24 v64, 12, v64')
    for i in range(NREC):
        a(f'v_cmp_lt_u32 vcc, {i}, v{V_MT}')
        a('s_and_b64 exec, exec, vcc')
        a('s_cbranch_execz K2_LD_DONE')
        a(f'buffer_load_dwordx3 v[{rec(i)}:{rec(i)+2}], v64, s[{SRD_WS}:{SRD_WS+3}], 0 offen offset:{24*i}')
    a('K2_LD_DONE:')
    a('s_mov_b64 exec, -1')
    if G0LAST:
        a(f's_add_u32 s37, s{S_WB}, 16384\ns_add_u32 s38, s{S_WB}, 8192\ns_add_u32 s39, s{S_WB}, 12288')
        for slot, f in enumerate((16, 17, 8, 9, 12, 13, 18, 19, 10, 11, 14, 15)):
            wload(a, slot, f, (None, None, 38, 39, 37)[f >> 2])
    else:
        a(f's_add_u32 s37, s{S_WB}, 4096\ns_add_u32 s38, s{S_WB}, 8192\ns_add_u32 s39, s{S_WB}, 12288')
        for slot, f in enumerate((0, 1, 4, 5, 2, 3, 6, 7, 8, 9, 12, 13)):
            wload(a, slot, f, (S_WB, 37, 38, 39)[f >> 2])
    nx = l2at('recq')
    if c.wpf:
        a(f'v_lshrrev_b32 v11, 4, v{l}\nv_min_u32 v11, 1, v11\nv_lshlrev_b32 v11, 11, v11')
        a(f'v_lshl_add_u32 v11, v{l}, 7, v11')
        a(f's_add_u32 s37, s{S_WB}, 10240')
        a(f'buffer_load_dword v11, v11, s[{SRD_WS}:{SRD_WS+3}], s37 offen')
        nx += 1
    if c.xwarm:
        a(f's_mul_i32 s37, s2, 320\ns_mul_i32 s38, s{S_W}, 40\ns_add_u32 s37, s37, s38\ns_lshl_b32 s37, s37, 7')
        a(f'v_lshlrev_b32 v14, 7, v{l}')
        a(f's_mov_b32 s{SRD_X+2}, {XBYTES}')
        a('s_bfm_b64 exec, 40, 0')
        a(f'buffer_load_dword v14, v14, s[{SRD_X}:{SRD_X+3}], s37 offen')
        a('s_mov_b64 exec, -1')
        nx += 1
    a('v_mov_b32 v68, 1')
    a('s_waitcnt lgkmcnt(0)')
    a('s_barrier')
    a('v_cmp_lt_u32 vcc, 20, v65')
    a('s_and_saveexec_b64 s[40:41], vcc')
    a('s_cbranch_execz K2_NOMORE')
    a(f'v_mov_b32 v69, {c.FLAG}')
    a('ds_write_b32 v69, v68')
    a('K2_NOMORE:')
    a('s_mov_b64 exec, s[40:41]')
    a(f's_waitcnt vmcnt({12+nx})')
    stp.full('rec_arr')
    l2at('rec')
    for i in range(NREC):
        a(f'v_cmp_lt_u32 vcc, {i}, v{V_MT}')
        a('s_and_b64 exec, exec, vcc')
        a('s_cbranch_execz K2_RK_DONE')
        a(f'v_and_b32 v{la(i)}, 0x3f8, v{rec(i)+2}')
        a(f'ds_add_rtn_u32 v{rec(i)+3}, v{la(i)}, v68 offset:{c.CNT}')
    a('K2_RK_DONE:')
    a('s_mov_b64 exec, -1')
    a(f'v_lshrrev_b32 v70, 3, v{l}')
    a(f'v_and_b32 v71, 7, v{l}')
    a(f's_mov_b32 s45, {AW}')
    a('v_mul_lo_u32 v72, v70, s45')
    a('v_lshl_add_u32 v72, v71, 3, v72')
    a(f'v_add_u32 v72, {c.AB + c.STG}, v72')
    a('v_lshlrev_b32 v73, 10, v70')
    a(f'v_add_u32 v73, {c.TBL}, v73')
    a(f'v_lshlrev_b32 v67, 3, v{l}')
    a(f'v_mov_b32 v69, {c.FLAG}')
    a('s_waitcnt lgkmcnt(0)')
    a('s_barrier')
    stp.full('rank_bar')
    l2at('rank')
    a(f'ds_read_b32 v68, v67 offset:{c.CNT}')
    a('ds_read_b32 v70, v69')
    a(f'v_cmp_gt_u32 vcc, 40, v{l}')
    a(f's_cmp_eq_u32 s{S_MODE}, 0')
    a('s_waitcnt lgkmcnt(0)')
    a(f'v_readfirstlane_b32 s{S_MORE}, v70')
    a('s_cbranch_scc0 K2_IDENT')
    if c.force_slow:
        a('s_branch K2_FALLBACK')
    a(f's_cmp_lg_u32 s{S_MORE}, 0\ns_cbranch_scc1 K2_FALLBACK')
    T0 = 196
    a('v_med3_u32 v71, v68, 17, 47')
    a('v_subrev_u32 v71, 16, v71')
    a('v_cndmask_b32 v71, 0, v71, vcc')
    for b in range(5):
        a(f'v_bfe_i32 v{T0+b}, v71, {b}, 1')
    MS = [36, 38, 40, 46, 48]
    for b in range(5):
        a(f'v_cmp_ne_u32_e64 s[{MS[b]}:{MS[b]+1}], 0, v{T0+b}')
    a('s_nop 1')
    GL, GH, EL, EH, UL, UH = 201, 202, 203, 204, 205, 206
    for b in (4, 3, 2, 1, 0):
        m, t = MS[b], T0 + b
        if b == 4:
            a(f'v_bfi_b32 v{GL}, v{t}, 0, s{m}')
            a(f'v_bfi_b32 v{GH}, v{t}, 0, s{m+1}')
            a(f'v_xnor_b32 v{EL}, s{m}, v{t}')
            a(f'v_xnor_b32 v{EH}, s{m+1}, v{t}')
        else:
            a(f'v_bfi_b32 v{UL}, v{t}, 0, s{m}')
            a(f'v_bfi_b32 v{UH}, v{t}, 0, s{m+1}')
            a(f'v_and_or_b32 v{GL}, v{EL}, v{UL}, v{GL}')
            a(f'v_and_or_b32 v{GH}, v{EH}, v{UH}, v{GH}')
            a(f'v_bitop3_b32 v{EL}, v{EL}, s{m}, v{t} bitop3:0x90')
            a(f'v_bitop3_b32 v{EH}, v{EH}, s{m+1}, v{t} bitop3:0x90')
    a(f'v_bcnt_u32_b32 v71, v{GL}, 0')
    a(f'v_bcnt_u32_b32 v71, v{GH}, v71')
    a(f'v_mbcnt_lo_u32_b32 v71, v{EL}, v71')
    a(f'v_mbcnt_hi_u32_b32 v71, v{EH}, v71')
    a('v_bfe_i32 v74, v71, 3, 1')
    a('v_xor_b32 v74, v71, v74')
    a('v_and_b32 v74, 7, v74')
    a('v_lshrrev_b32 v71, 3, v71')
    a('v_lshl_add_u32 v71, v74, 3, v71')
    a('s_branch K2_PERM')
    a('K2_IDENT:')
    a(f'v_mul_u32_u24 v71, 52, v{l}\nv_lshrrev_b32 v71, 8, v71')
    a(f'v_mad_u32_u24 v71, v71, 3, v{l}')
    a(f'v_subrev_u32 v74, 40, v{l}')
    a('v_mul_u32_u24 v75, 86, v74\nv_lshrrev_b32 v75, 8, v75')
    a('v_mad_u32_u24 v75, v75, 5, v74')
    a('v_add_u32 v75, 5, v75')
    a('v_cndmask_b32 v71, v75, v71, vcc')
    a('K2_PERM:')
    a('v_lshlrev_b32 v71, 2, v71')
    a(f'v_lshl_or_b32 v74, v{l}, 16, v68')
    a('ds_permute_b32 v75, v71, v74')
    a('s_waitcnt lgkmcnt(0)')
    a('v_and_b32 v76, 0xffff, v75')
    a('v_mov_b32 v77, v76')
    a('s_nop 1')
    a('v_add_u32_dpp v77, v77, v77 row_shr:1 row_mask:0xf bank_mask:0xf')
    a('s_nop 1')
    a('v_add_u32_dpp v77, v77, v77 row_shr:2 row_mask:0xf bank_mask:0xf')
    a('s_nop 1')
    a('v_add_u32_dpp v77, v77, v77 row_shr:4 row_mask:0xf bank_mask:0xa')
    a(f's_mov_b32 s45, {16*NMAX}')
    a('v_cmp_lt_u32 vcc, s45, v77')
    a('v_sub_u32 v78, v77, v76')
    a(f's_lshl_b32 s46, s{S_W}, 3')
    a(f's_cmp_eq_u32 s{S_MODE}, 0\ns_cbranch_scc0 K2_GO')
    a('s_cmp_lg_u64 vcc, 0\ns_cbranch_scc1 K2_FALLBACK')
    a('K2_GO:')
    a('v_lshl_add_u32 v72, v78, 6, v72')
    a('v_lshl_add_u32 v73, v78, 2, v73')
    a('v_lshrrev_b32 v74, 16, v75')
    a('v_lshlrev_b32 v76, 3, v74')
    a(f'ds_write_b64 v76, v[72:73] offset:{c.OFF}')
    a('s_add_u32 s47, s46, 7')
    a(f'v_readlane_b32 s{S_N}, v77, s47')
    for q in range(5):
        if q: a('s_add_u32 s46, s46, 1')
        a(f'v_readlane_b32 s{S_NODE+q}, v74, s46')
    a('s_waitcnt lgkmcnt(0)')
    for i in range(NREC):
        a(f'v_cmp_lt_u32 vcc, {i}, v{V_MT}')
        a('s_and_b64 exec, exec, vcc')
        a('s_cbranch_execz K2_OF_DONE')
        a(f'ds_read_b64 v[{offp(i)}:{offp(i)+1}], v{la(i)} offset:{c.OFF}')
    a('K2_OF_DONE:')
    a('s_mov_b64 exec, -1')
    a(f's_add_u32 s{S_N}, s{S_N}, 15\ns_lshr_b32 s{S_N}, s{S_N}, 4\ns_max_u32 s{S_N}, s{S_N}, {NMIN}')
    a('s_mul_i32 s45, s2, 40')
    for q in range(5):
        a(f's_add_u32 s{S_NODE+q}, s{S_NODE+q}, s45\ns_lshl_b32 s{S_NODE+q}, s{S_NODE+q}, 10')
    a('s_waitcnt lgkmcnt(0)')
    for i in range(NREC):
        a(f'v_cmp_lt_u32 vcc, {i}, v{V_MT}')
        a('s_and_b64 exec, exec, vcc')
        a('s_cbranch_execz K2_SC_DONE')
        a(f'v_lshl_add_u32 v{offp(i)}, v{rec(i)+3}, 6, v{offp(i)}')
        a(f'v_lshl_add_u32 v{offp(i)+1}, v{rec(i)+3}, 2, v{offp(i)+1}')
        a(f'ds_write_b64 v{offp(i)}, v[{rec(i)}:{rec(i)+1}]')
        a(f'ds_write_b32 v{offp(i)+1}, v{rec(i)+2}')
    a('K2_SC_DONE:')
    a('s_mov_b64 exec, -1')
    a(f's_lshl_b32 s38, s{S_W}, 10\ns_add_u32 s38, s38, {c.TBL}')
    a(f'v_lshrrev_b32 v67, 3, v{l}')
    a('v_lshl_add_u32 v67, v67, 2, s38')
    a(f'v_bfe_u32 v68, v{l}, 2, 2')
    a(f'v_lshrrev_b32 v70, 5, v{l}')
    a('v_lshl_add_u32 v68, v70, 3, v68')
    a('v_lshlrev_b32 v68, 6, v68')
    a(f'v_bfe_u32 v69, v{l}, 4, 1')
    a('v_lshl_add_u32 v68, v69, 5, v68')
    a(f'v_and_b32 v69, 3, v{l}')
    a('v_lshl_add_u32 v68, v69, 3, v68')
    a(f's_add_u32 s38, s{S_RB}, {c.STG}')
    a('v_add_u32 v68, s38, v68')
    a(f's_mov_b32 s{S_SOFF}, {128*(c.order[0] if G0LAST else c.soff0)}\ns_mov_b32 s{S_RO}, 0')
    a(f's_mov_b32 s{SRD_X+2}, {XBYTES}\ns_mov_b32 s{SRD_X1+2}, {XBYTES+1024}')
    a(f's_mov_b32 m0, s{S_RB}')
    a('s_waitcnt lgkmcnt(0)')
    a('s_barrier')
    stp.full('scat_bar')
    l2at('scat')
    if c.dbg == 'pro':
        dump_lds(a, c)
        return
    PI = 16
    for t in range(3):
        a(f'ds_read2_b32 v[{PI+2*t}:{PI+2*t+1}], v67 offset0:{16*t} offset1:{16*t+8}')
    for cc in range(9):
        t = cc + 3
        a(f'ds_read2_b32 v[{PA+2*cc}:{PA+2*cc+1}], v67 offset0:{16*t} offset1:{16*t+8}')
    a('s_waitcnt lgkmcnt(9)')
    for t in range(3):
        a(f'v_and_or_b32 v{PI+2*t}, v{PI+2*t}, s{S_MASK}, v{V_CHUNK}')
        a(f'v_and_or_b32 v{PI+2*t+1}, v{PI+2*t+1}, s{S_MASK}, v{V_CHUNK}')
        if t: a(f's_add_u32 m0, s{S_RB}, {2048*t}')
        if t: a('s_nop 0')
        a(f'buffer_load_dwordx4 v{PI+2*t}, s[{SRD_X}:{SRD_X+3}], s{S_SOFF} offen lds')
        a(f'buffer_load_dwordx4 v{PI+2*t+1}, s[{SRD_X1}:{SRD_X1+3}], s{S_SOFF} offen offset:1024 lds')
    a(f's_add_u32 m0, s{S_RB}, 6144')
    a('s_waitcnt lgkmcnt(0)')
    def coefread(s):
        a(f'ds_read_b64_tr_b16 v[{COEF+4*s}:{COEF+4*s+1}], v68 offset:{1024*s}')
        a(f'ds_read_b64_tr_b16 v[{COEF+4*s+2}:{COEF+4*s+3}], v68 offset:{1024*s+256}')
    for s in range(6):
        coefread(s)
    for i in range(18):
        a(f'v_and_or_b32 v{PA+i}, v{PA+i}, s{S_MASK}, v{V_CHUNK}')
    a('s_waitcnt lgkmcnt(3)')
    for s in range(6, 12):
        coefread(s)
    nxt = 0 if G0LAST else 128
    for i in range(6):
        a(f'v_add_u32 v{PA+2*(NMAX-3)+i}, {nxt}, v{PI+i}')
    for n in range(NMIN, NMAX):
        a(f's_cmp_eq_u32 s{S_N}, {n}\ns_cbranch_scc0 K2_FX{n+1}')
        for i in range(6):
            a(f'v_add_u32 v{PA+2*(n-3)+i}, {nxt}, v{PI+i}')
        if n < NMAX - 1:
            a('s_branch K2_FXD')
        a(f'K2_FX{n+1}:')
    a('K2_FXD:')

    def dmas(p, cc):
        if p == 7 and c.zero7 and NMIN - 3 <= cc <= NMAX - 3:
            a(f's_cmp_eq_u32 s{S_N}, {cc+3}')
            a(f's_cselect_b32 s{SRD_X+2}, 0, s{SRD_X+2}\ns_cselect_b32 s{SRD_X1+2}, 0, s{SRD_X1+2}')
        elif G0LAST and p < 7 and NMIN - 3 <= cc <= NMAX - 3:
            a(f's_cmp_eq_u32 s{S_N}, {cc+3}')
            a(f's_cselect_b32 s{S_SOFF}, {128*c.order[p+1]}, s{S_SOFF}')
        if 'nodma' not in c.abl:
            a(f'buffer_load_dwordx4 v{PA+2*cc}, s[{SRD_X}:{SRD_X+3}], s{S_SOFF} offen lds')
            a(f'buffer_load_dwordx4 v{PA+2*cc+1}, s[{SRD_X1}:{SRD_X1+3}], s{S_SOFF} offen offset:1024 lds')

    def soff_adv():
        if G0LAST: return
        a(f's_add_u32 s{S_SOFF}, s{S_SOFF}, 128')
        if c.soff0: a(f's_and_b32 s{S_SOFF}, s{S_SOFF}, 0x3ff')

    def ring_adv():
        a(f's_add_u32 m0, s{S_RB}, s{S_RO}')
        a(f's_add_u32 s{S_RO}, s{S_RO}, 2048\ns_and_b32 s{S_RO}, s{S_RO}, 0x1fff')

    def back(cc):
        if 'noback' in c.abl: return
        s = SET[cc & 1]
        for T in range(2):
            src = f'v[{AGG+16*T}:{AGG+16*T+15}]' if cc else '0'
            a(f'v_mfma_f32_32x32x16_bf16 v[{AGG+16*T}:{AGG+16*T+15}], v[{s+4*T}:{s+4*T+3}], v[{COEF+4*cc}:{COEF+4*cc+3}], {src}')

    def fwrite(p):
        if 'nofw' in c.abl: return
        for T in range(2):
            for i in range(8):
                a(f'v_cvt_pk_bf16_f32 v{G2B+8*T+i}, v{AGG+16*T+2*i}, v{AGG+16*T+2*i+1}')
        a(f's_mov_b64 exec, s[{S_FWM}:{S_FWM+1}]')
        for T in range(2):
            for u in range(2):
                a(f'ds_write_b128 v{V_FW}, v[{G2B+8*T+4*u}:{G2B+8*T+4*u+3}] offset:{T*3072 + u*1536}')
        a('s_mov_b64 exec, -1')
        a(f'v_{"add" if p % 2 == 0 else "subrev"}_u32 v{V_FW}, s{S_FT}, v{V_FW}')

    def flip(half):
        base = WREG + (0 if half == 0 else 24)
        for i in range(8):
            a(f'v_xor_b32 v{base+i}, 0x80008000, v{base+i}')

    def batches(pr):
        plan = g2_plan(pr, c)
        bt, cur = [], []
        for t in plan:
            if t[0] == 'flip':
                cur.append(t)
                continue
            if sum(1 for x in cur if x[0] == 'mm') == 4:
                bt.append(cur); cur = []
            cur.append(t)
        bt.append(cur)
        assert len(bt) == 6
        return bt

    def trreads(cc):
        if 'notr' in c.abl: return
        st = SET[cc & 1]
        a(f'ds_read_b64_tr_b16 v[{st}:{st+1}], v{V_R0}')
        a(f'ds_read_b64_tr_b16 v[{st+2}:{st+3}], v{V_R0} offset:512')
        a(f'ds_read_b64_tr_b16 v[{st+4}:{st+5}], v{V_R1}')
        a(f'ds_read_b64_tr_b16 v[{st+6}:{st+7}], v{V_R1} offset:512')

    def step(p, cc):
        g2 = p > 0 and 'nog2' not in c.abl
        bt = batches(p - 1) if p > 0 else None
        mark = len(a.L)
        a(f'v_add_u32 v{V_R0}, s{S_RO}, v{V_TRL0}')
        a(f'v_add_u32 v{V_R1}, s{S_RO}, v{V_TRL1}')
        wl = p in ((6, 7) if G0LAST else (2, 3)) and f'now{p}' not in c.abl
        extra = 4 if (wl and 1 <= cc <= 3) else 0
        if cc == 0: stp.issue()
        if cc == 0 and p == 0 and c.stamp: a('s_memtime s[82:83]')
        if p == c.stepst:
            a('s_memtime s[90:91]')
            a('s_waitcnt lgkmcnt(0)')
            a(f'v_writelane_b32 v248, s90, {4*cc}')
            if cc:
                a(f'v_writelane_b32 v248, s92, {4*cc-3}')
                a(f'v_writelane_b32 v248, s94, {4*cc-2}')
            a('s_memtime s[92:93]')
            a(f's_waitcnt vmcnt({2*(R-2)+extra})')
            a('s_memtime s[94:95]')
        else:
            a(f's_waitcnt vmcnt({2*(R-2)+extra}) lgkmcnt(0)')
        if cc == 0: stp.save(f'ph{p}')
        if cc == B and 'nobar' not in c.abl:
            a('s_barrier')
        if c.dma_first: dmas(p, cc)
        trreads(cc)
        if not c.dma_first and cc == 0: dmas(p, cc)
        if cc == 0:
            if wl and G0LAST:
                a(f's_add_u32 s37, s{S_WB}, 4096')
                if p == 6:
                    wload(a, 0, 0, S_WB); wload(a, 1, 1, S_WB); wload(a, 2, 4, 37); wload(a, 3, 5, 37)
                else:
                    wload(a, 6, 2, S_WB); wload(a, 7, 3, S_WB); wload(a, 8, 6, 37); wload(a, 9, 7, 37)
            elif wl:
                a(f's_add_u32 s37, s{S_WB}, {16384 if p == 2 else 12288}')
                a(f's_add_u32 s38, s{S_WB}, {8192 if p == 2 else 16384}')
                if p == 2:
                    wload(a, 0, 16, 37); wload(a, 1, 17, 37); wload(a, 2, 10, 38); wload(a, 3, 11, 38)
                else:
                    wload(a, 4, 14, 37); wload(a, 5, 15, 37); wload(a, 6, 18, 38); wload(a, 7, 19, 38)
            ring_adv()
            if p > 0:
                n = len(a.L) - mark + 1
                if n < 13:
                    a(f's_nop {12 - n}')
                fwrite(p - 1)
            return
        if cc == 1 and p >= 2:
            op = 'add' if p % 2 == 0 else 'subrev'
            a(f'v_{op}_u32 v{V_FRA}, s{S_FT}, v{V_FRA}')
            a(f'v_{op}_u32 v{V_FRB}, s{S_FT}, v{V_FRB}')
        def g2mm():
            if g2 and B + 1 <= cc <= B + 6:
                n = 0
                for t in bt[cc - B - 1]:
                    if t[0] == 'flip':
                        continue
                    a(f'v_mfma_f32_16x16x32_bf16 v[{t[4]}:{t[4]+3}], v[{t[3]}:{t[3]+3}], v[{G2B+4*n}:{G2B+4*n+3}], v[{t[4]}:{t[4]+3}]')
                    n += 1
        def g2rd():
            if g2 and B <= cc <= B + 5:
                n = 0
                for t in bt[cc - B]:
                    if t[0] == 'flip':
                        continue
                    a(f'ds_read_b128 v[{G2B+4*n}:{G2B+4*n+3}], v{t[1]} offset:{t[2]}')
                    n += 1
        if c.g2first:
            g2mm(); g2rd(); back(cc - 1)
        else:
            back(cc - 1); g2mm(); g2rd()
        if g2 and c.order[p - 1] >= 2 and cc == B + 3 and 'noflip' not in c.abl:
            flip(c.order[p - 1] & 1)
        if not c.dma_first: dmas(p, cc)
        ring_adv()

    if c.loopdbg: a('s_mov_b32 s80, 0')
    for p in range(8):
        a(f'; ---------------- phase {p}')
        if c.loopdbg and p == 6:
            a('K2_PH6:')
            a('s_cmp_eq_u32 s80, 0\ns_mov_b32 s80, 1\ns_cbranch_scc1 K2_PH4\ns_branch K2_TAIL')
            a('K2_PH6x:')
        else:
            a(f'K2_PH{p}:')
        for cc in range(NMAX):
            step(p, cc)
            if NMIN - 1 <= cc:
                if cc < NMAX - 1:
                    a(f's_cmp_eq_u32 s{S_N}, {cc+1}\ns_cbranch_scc1 K2_X{p}_{cc}')
                else:
                    a('s_waitcnt lgkmcnt(0)')
                    back(cc)
                    soff_adv()
                    a(f's_branch {"K2_PH%d" % (p+1) if p < 7 else "K2_TAIL"}')
        for cc in range(NMIN - 1, NMAX - 1):
            a(f'K2_X{p}_{cc}:')
            a('s_waitcnt lgkmcnt(0)')
            back(cc)
            soff_adv()
            if not (p < 7 and cc == NMAX - 2):
                a(f's_branch {"K2_PH%d" % (p+1) if p < 7 else "K2_TAIL"}')
            elif p == 7:
                pass
    a('K2_TAIL:')
    stp.issue()
    if c.stamp: a('s_memtime s[84:85]')
    a('s_nop 7\ns_nop 3')
    if c.stamp:
        a('s_waitcnt lgkmcnt(0)')
    stp.save('tail')
    fwrite(7)
    for op in ('add',):
        a(f'v_{op}_u32 v{V_FRA}, s{S_FT}, v{V_FRA}')
        a(f'v_{op}_u32 v{V_FRB}, s{S_FT}, v{V_FRB}')
    a('s_waitcnt vmcnt(0) lgkmcnt(0)')
    a('s_barrier')
    plan = g2_plan(7, c)
    regs = [COEF + 4 * i for i in range(12)] + [AGG + 4 * i for i in range(8)] + [SET[0] + 4 * i for i in range(4)]
    mm = [t for t in plan if t[0] == 'mm']
    fl = ([i for i, t in enumerate(plan) if t[0] == 'flip'] + [1000])[0]
    def rd(n): a(f'ds_read_b128 v[{regs[n]}:{regs[n]+3}], v{mm[n][1]} offset:{mm[n][2]}')
    for n in range(12): rd(n)
    for n in range(24):
        if n == fl - 6:
            flip(1)
        a(f's_waitcnt lgkmcnt({11 if n < 12 else 23 - n})')
        t = mm[n]
        a(f'v_mfma_f32_16x16x32_bf16 v[{t[4]}:{t[4]+3}], v[{t[3]}:{t[3]+3}], v[{regs[n]}:{regs[n]+3}], v[{t[4]}:{t[4]+3}]')
        if n < 12: rd(12 + n)
    a(f'v_subrev_u32 v{V_FRA}, s{S_FT}, v{V_FRA}')
    a(f'v_subrev_u32 v{V_FRB}, s{S_FT}, v{V_FRB}')
    a(f's_cmp_eq_u32 s{S_MODE}, 0\ns_cbranch_scc1 K2_EPI')
    a(f's_cmp_lg_u32 s{S_MORE}, 0\ns_cbranch_scc0 K2_NEXTC')
    a(f's_add_u32 s{S_J0}, s{S_J0}, 20')
    a('s_branch K2_RELOAD')
    a('K2_NEXTC:')
    a(f's_mov_b32 s{S_J0}, 0')
    a(f's_add_u32 s{S_C0}, s{S_C0}, s{S_CN}')
    a(f's_cmp_ge_u32 s{S_C0}, {NCH}\ns_cbranch_scc1 K2_EPI')
    a('s_branch K2_RELOAD')
    a('K2_FALLBACK:')
    a(f's_mov_b32 s{S_MODE}, 1\ns_mov_b32 s{S_CN}, 9\ns_mov_b32 s{S_C0}, 0\ns_mov_b32 s{S_J0}, 0')
    a('K2_RELOAD:')
    a('s_waitcnt vmcnt(0) lgkmcnt(0)')
    a('s_barrier')
    a('v_lshrrev_b32 v61, 1, v0')
    a(f'v_add_u32 v61, s{S_C0}, v61')
    a('v_min_u32 v61, 255, v61')
    a('v_lshlrev_b32 v62, 10, v61')
    a(f'buffer_load_dword v63, v62, s[{SRD_WS}:{SRD_WS+3}], s{S_TG} offen')
    a('s_waitcnt vmcnt(0)')
    a('s_branch K2_ROUND')
    a('K2_EPI:')
    stp.full('epi')
    a('s_nop 7')
    a(f'v_and_b32 v12, 15, v{l}\nv_lshrrev_b32 v13, 4, v{l}')
    a('v_mul_u32_u24 v12, 1040, v12')
    a('v_lshl_add_u32 v12, v13, 3, v12')
    a(f's_lshl_b32 s37, s{S_W}, 5')
    a('v_add_u32 v12, s37, v12')
    a(f's_mul_i32 s37, s{S_W}, {5*1040}')
    a(f'v_add_u32 v13, s37, v{V_L16}')
    a('s_mov_b32 s45, 0xbfb8aa3b')
    for nt in range(3):
        g = 20 + 4 * nt
        for r in range(4):
            a(f'v_mul_f32 v{g+r}, s45, v{OUT + nt*4 + r}')
        for r in range(4):
            a(f'v_exp_f32 v{g+r}, v{g+r}')
        a('s_nop 0')
        for r in range(4):
            a(f'v_add_f32 v{g+r}, 1.0, v{g+r}')
        for r in range(4):
            a(f'v_rcp_f32 v{g+r}, v{g+r}')
    a('s_nop 0')
    tmp = 32
    for nt in range(3):
        g = 20 + 4 * nt
        for o in range(4):
            q = OUT + (o * 3 + nt) * 4
            if o:
                for r in range(4):
                    a(f'v_mul_f32 v{q+r}, v{q+r}, v{g+r}')
            a(f'v_cvt_pk_bf16_f32 v{tmp}, v{q}, v{q+1}')
            a(f'v_cvt_pk_bf16_f32 v{tmp+1}, v{q+2}, v{q+3}')
            a(f'ds_write_b64 v12, v[{tmp}:{tmp+1}] offset:{nt*16640 + o*256}')
            tmp += 2
    a('s_waitcnt lgkmcnt(0)')
    a('s_barrier')
    for q in range(5):
        a(f'ds_read_b128 v[{64+4*q}:{67+4*q}], v13 offset:{1040*q}')
    for q in range(5):
        a(f's_waitcnt lgkmcnt({4-q})')
        a(f'buffer_store_dwordx4 v[{64+4*q}:{67+4*q}], v{V_L16}, s[{SRD_OUT}:{SRD_OUT+3}], s{S_NODE+q} offen {c.osc}')
    stp.full('st_issued')
    if c.stamp:
        a('s_waitcnt vmcnt(0)')
        stp.full('end')
        a(f's_mov_b32 s{stp.base+len(stp.names)}, s{S_N}')
        stp.names.append('N')
        a(f's_mov_b32 s{stp.base+len(stp.names)}, s{S_MODE}')
        stp.names.append('mode')
        a(f's_sub_u32 s{stp.base+len(stp.names)}, s84, s82')
        stp.names.append('cyc')
        a(f's_sub_u32 s{stp.base+len(stp.names)}, s82, s86')
        stp.names.append('cyc0')
        print('K2 stamps:', stp.names)
    if c.stepst >= 0:
        a(f's_add_u32 s96, s34, {WS_DBG}\ns_addc_u32 s97, s35, 0\ns_mov_b32 s98, {256*8*256}\ns_mov_b32 s99, 0x20000')
        a(f's_lshl_b32 s90, s2, 3\ns_add_u32 s90, s90, s{S_W}\ns_lshl_b32 s90, s90, 8')
        a(f'v_mov_b32 v2, s{S_N}\nv_writelane_b32 v248, s{S_N}, 63')
        a(f'v_lshlrev_b32 v3, 2, v{V_LANE}')
        a('buffer_store_dword v248, v3, s[96:99], s90 offen')
        a('s_waitcnt vmcnt(0)')
    stp.dump(34, WS_ST2, S_W, 8, 96)
    a('K2_END:')
    a('s_endpgm')


def dump_lds(a, c):
    n = (c.LDS + 8191) // 8192
    a('s_waitcnt lgkmcnt(0)\ns_barrier')
    a(f's_mul_i32 s36, s2, {n*8192}')
    a(f's_add_u32 s30, s34, {WS_DBG}\ns_addc_u32 s31, s35, 0')
    srd(a, 80, 30, 250 * n * 8192)
    a('v_lshlrev_b32 v60, 4, v0')
    for k in range(n):
        a(f'v_add_u32 v61, {k*8192}, v60')
        if (k + 1) * 8192 > c.LDS:
            a(f'v_min_u32 v61, {c.LDS-16}, v61')
        a('ds_read_b128 v[64:67], v61')
        a('s_waitcnt lgkmcnt(0)')
        a('buffer_store_dwordx4 v[64:67], v60, s[80:83], s36 offen')
        a('s_add_u32 s36, s36, 8192')
        a('s_nop 1')
    a('s_waitcnt vmcnt(0)')
    a('K2_END:')
    a('s_endpgm')


def build(**kw):
    c = Cfg(**kw)
    a = Asm()
    hdr = header()
    hdr.append(f'; @launch kernel={K1} grid=({gen2_k1.K1_GRID},1,1) block=(320,1,1) lds={gen2_k1.K1_LDS}')
    hdr.append(f'; @launch kernel={K2} grid=({NBIN},1,1) block=(512,1,1) lds={c.LDS}')
    a.L += hdr
    a.L.append('.amdgcn_target "amdgcn-amd-amdhsa--gfx950"')
    a.L.append('.text')
    gen_k2(a, c)
    gen2_k1.gen_k1(a, stamp=c.stamp, sc=c.k1sc, pf=c.k1pf)
    a.L.append('.section .rodata,"a"')
    a.L.append('.p2align 6')
    txt = a.text() + descriptor(K2, 256, 102) + '.p2align 6\n' + descriptor(K1, 72 + (4 if c.k1pf else 0), 102 if c.stamp else 64)
    return txt, c


if __name__ == '__main__':
    kw = eval('dict(' + (sys.argv[2] if len(sys.argv) > 2 else '') + ')')
    txt, c = build(**kw)
    out = sys.argv[1]
    open(out, 'w').write(txt)
    print('written', out, 'LDS', c.LDS, 'lines', txt.count('\n'))
```

```python
from gen import Asm, srd, Stamp, descriptor, header, NAME, K2, K1

NBIN = 250
NCH = 250
CHUNK = 1280
WS_REC = 0
WS_TBL = 0x400000
WS_WF = 0x480000
OOB = 0x7F000000
XBYTES = 10240000
WS_ST1 = 0x900000
WS_ST2 = 0xA00000
K1_GRID = NCH + 32
K1_LDS = 2048 + CHUNK * 12


def gen_k1(a, stamp=False, sc='sc0 sc1', old=False, pf=0):
    st = Stamp(a, stamp, 62, 64)
    HIST, OFF, STG = 0, 1024, 2048
    a(f'.globl {K1}\n.p2align 8\n.type {K1},@function\n{K1}:')
    a(f's_cmp_ge_u32 s2, {K1_GRID}\ns_cbranch_scc1 K1_END')
    a('s_load_dwordx4 s[4:7], s[0:1], 8')
    a('s_load_dwordx4 s[8:11], s[0:1], 24')
    a('s_load_dwordx2 s[12:13], s[0:1], 88')
    if pf:
        a('s_load_dwordx2 s[44:45], s[0:1], 0')
        a('s_lshr_b32 s56, s2, 3\ns_mul_i32 s56, s56, 320')
        a('v_add_u32 v68, s56, v0\nv_lshlrev_b32 v68, 10, v68')
    def prefetch():
        if not pf: return
        srd(a, 44, 44, XBYTES)
        for k in range(pf):
            a(f'buffer_load_dword v{69+k}, v68, s[44:47], 0 offen offset:{128*k}')
    st.full('start')
    a('v_lshrrev_b32 v1, 6, v0')
    a(f's_cmp_ge_u32 s2, {NCH}\ns_cbranch_scc1 K1_FOLD')
    a('v_readfirstlane_b32 s3, v1')
    a(f's_mul_i32 s14, s2, {CHUNK}')
    a('v_lshlrev_b32 v1, 2, v0')
    a('v_add_u32 v1, s14, v1')
    a('v_lshlrev_b32 v2, 2, v1')
    a('v_mul_u32_u24 v3, 6, v1')
    a('v_lshlrev_b32 v40, 1, v1')
    a('s_waitcnt lgkmcnt(0)')
    srd(a, 16, 10, 1280000)
    a('buffer_load_dwordx4 v[4:7], v2, s[16:19], 0 offen')
    srd(a, 20, 8, 1280000)
    a('buffer_load_dwordx4 v[8:11], v2, s[20:23], 0 offen')
    srd(a, 24, 4, 1920000)
    a('buffer_load_dwordx4 v[12:15], v3, s[24:27], 0 offen')
    a('buffer_load_dwordx2 v[16:17], v3, s[24:27], 0 offen offset:16')
    srd(a, 28, 6, 640000)
    a('buffer_load_dwordx2 v[18:19], v40, s[28:31], 0 offen')
    prefetch()
    srd(a, 32, 12, 320000 * 12, WS_REC)
    srd(a, 36, 12, NCH * 1024, WS_TBL)
    a('s_cmp_lg_u32 s3, 0\ns_cbranch_scc1 K1_NOZ')
    a('v_mov_b32 v44, 0\nv_mov_b32 v45, 0\nv_mov_b32 v46, 0\nv_mov_b32 v47, 0')
    a('v_lshlrev_b32 v41, 4, v0')
    a(f'ds_write_b128 v41, v[44:47] offset:{HIST}')
    a('s_waitcnt lgkmcnt(0)')
    a('K1_NOZ:')
    a('s_barrier')
    a('s_mov_b32 s40, -40')
    a('v_mov_b32 v42, 1')
    a(f's_mov_b32 s41, {STG}')
    a(f's_waitcnt vmcnt({4+pf})')
    st.full('dst_arr')
    for i in range(4):
        a(f'v_mul_u32_u24 v{48+i}, 52429, v{4+i}')
    for i in range(4):
        a(f'v_lshrrev_b32 v{48+i}, 21, v{48+i}')
    for i in range(4):
        a(f'v_mad_i32_i24 v{52+i}, v{48+i}, s40, v{4+i}')
        a(f'v_lshlrev_b32 v{48+i}, 2, v{48+i}')
    for i in range(4):
        a(f'ds_add_rtn_u32 v{56+i}, v{48+i}, v42 offset:{HIST}')
    if old:
        for i in range(4):
            a(f'v_mul_u32_u24 v{60+i}, 52, v{52+i}')
        for i in range(4):
            a(f'v_lshrrev_b32 v{60+i}, 8, v{60+i}')
        for i in range(4):
            a(f'v_mad_u32_u24 v{52+i}, v{60+i}, 3, v{52+i}')
    D0, D1, D2 = (0, 1, 2) if old else (2, 0, 1)
    a(f's_waitcnt vmcnt({3+pf})')
    for i in range(4):
        a(f'v_lshlrev_b32 v{60+i}, 10, v{8+i}')
        a(f'v_lshl_or_b32 v{20+D0+4*i}, v{52+i}, {24 if old else 3}, v{60+i}')
    a(f's_waitcnt vmcnt({pf})')
    a('v_lshlrev_b32 v60, 16, v18\nv_and_b32 v61, 0xffff0000, v18')
    a('v_lshlrev_b32 v62, 16, v19\nv_and_b32 v63, 0xffff0000, v19')
    ysrc = [[(12, 0), (12, 1), (13, 0)], [(13, 1), (14, 0), (14, 1)],
            [(15, 0), (15, 1), (16, 0)], [(16, 1), (17, 0), (17, 1)]]
    for i in range(4):
        for k in range(3):
            r, hi = ysrc[i][k]
            if hi:
                a(f'v_and_b32 v{64+k}, 0xffff0000, v{r}')
            else:
                a(f'v_lshlrev_b32 v{64+k}, 16, v{r}')
        for k in range(3):
            a(f'v_mul_f32 v{64+k}, v{60+i}, v{64+k}')
        a(f'v_cvt_pk_bf16_f32 v{20+D1+4*i}, v{60+i}, v64')
        a(f'v_cvt_pk_bf16_f32 v{20+D2+4*i}, v65, v66')
    a('s_waitcnt lgkmcnt(0)')
    st.full('rec_ready')
    a('s_barrier')
    a('v_and_b32 v41, 63, v0')
    a('v_lshlrev_b32 v43, 4, v41')
    a(f'ds_read_b128 v[4:7], v43 offset:{HIST}')
    a('s_waitcnt lgkmcnt(0)')
    a('v_add_u32 v8, v4, v5')
    a('v_add_u32 v9, v8, v6')
    a('v_add_u32 v10, v9, v7')
    a('v_mov_b32 v11, v10')
    for sh in (1, 2, 4, 8):
        a('s_nop 1')
        a(f'v_add_u32_dpp v11, v11, v11 row_shr:{sh} row_mask:0xf bank_mask:0xf')
    a('s_nop 1')
    a('v_add_u32_dpp v11, v11, v11 row_bcast:15 row_mask:0xa bank_mask:0xf')
    a('s_nop 1')
    a('v_add_u32_dpp v11, v11, v11 row_bcast:31 row_mask:0xc bank_mask:0xf')
    a('v_sub_u32 v12, v11, v10')
    a('v_add_u32 v13, v12, v4')
    a('v_add_u32 v14, v12, v8')
    a('v_add_u32 v15, v12, v9')
    a(f'ds_write_b128 v43, v[12:15] offset:{OFF}')
    for i in range(4):
        a(f'ds_read_b32 v{60+i}, v{48+i} offset:{OFF}')
    a('s_cmp_lg_u32 s3, 0\ns_cbranch_scc1 K1_NOT')
    a('s_lshl_b32 s15, s2, 10')
    for i in range(4):
        a(f'v_lshl_or_b32 v{8+i}, v{4+i}, 16, v{12+i}')
    a(f'buffer_store_dwordx4 v[8:11], v43, s[36:39], s15 offen {sc}')
    a('K1_NOT:')
    a('s_waitcnt lgkmcnt(0)')
    for i in range(4):
        a(f'v_add_u32 v{60+i}, v{60+i}, v{56+i}')
        a(f'v_mad_u32_u24 v{60+i}, v{60+i}, 12, s41')
    for i in range(4):
        a(f'ds_write2_b32 v{60+i}, v{20+4*i}, v{21+4*i} offset0:0 offset1:1')
        a(f'ds_write_b32 v{60+i}, v{22+4*i} offset:8')
    a('v_lshlrev_b32 v2, 4, v0')
    a(f's_mul_i32 s15, s2, {CHUNK*12}')
    a('s_add_u32 s42, s15, 5120\ns_add_u32 s43, s15, 10240')
    a('s_waitcnt lgkmcnt(0)')
    a('s_barrier')
    for k in range(3):
        a(f'ds_read_b128 v[{4+4*k}:{7+4*k}], v2 offset:{STG + 5120*k}')
    for k, sr in enumerate(('s15', 's42', 's43')):
        a(f's_waitcnt lgkmcnt({2-k})')
        a(f'buffer_store_dwordx4 v[{4+4*k}:{7+4*k}], v2, s[32:35], {sr} offen {sc}')
    st.full('st_issued')
    if stamp:
        a('s_waitcnt vmcnt(0)')
        st.full('end')
        st.dump(12, WS_ST1, 3, 8, 44)
    a('s_endpgm')
    a('K1_FOLD:')
    a('v_readfirstlane_b32 s3, v1')
    a('s_load_dwordx2 s[18:19], s[0:1], 40')
    a('s_load_dwordx4 s[20:23], s[0:1], 48')
    a('v_and_b32 v1, 63, v0')
    a(f's_sub_u32 s14, s2, {NCH}\ns_mul_i32 s14, s14, 5\ns_add_u32 s14, s14, s3')
    a('s_mul_i32 s24, s14, 3277\ns_lshr_b32 s24, s24, 16')
    a('s_mul_i32 s25, s24, 20\ns_sub_u32 s25, s14, s25')
    a('s_lshr_b32 s26, s25, 2\ns_and_b32 s27, s25, 3')
    a('s_waitcnt lgkmcnt(0)')
    srd(a, 48, 18, 1280)
    a('s_cmp_eq_u32 s26, 0\ns_cselect_b32 s28, 1, 0')
    a('s_cmp_eq_u32 s26, 3\ns_cselect_b32 s28, 1, s28')
    a('s_cmp_eq_u32 s28, 1')
    a('s_cselect_b32 s52, s20, s22\ns_cselect_b32 s53, s21, s23')
    a('s_mov_b32 s54, 98304')
    a('s_cselect_b32 s54, 65536, s54')
    a('s_mov_b32 s55, 0x20000')
    a('s_lshr_b32 s29, s26, 1')
    a('s_mov_b32 s30, 0')
    a('s_cmp_eq_u32 s26, 1\ns_cselect_b32 s30, 2, s30')
    a('s_cmp_eq_u32 s26, 2\ns_cselect_b32 s30, 3, s30')
    a('s_cmp_eq_u32 s26, 3\ns_cselect_b32 s30, 1, s30')
    a('s_cmp_eq_u32 s26, 4\ns_cselect_b32 s30, 4, s30')
    srd(a, 56, 12, 160 * 1024, WS_WF)
    a('v_lshrrev_b32 v2, 4, v1\nv_and_b32 v3, 15, v1')
    a('v_lshlrev_b32 v4, 2, v2')
    a('s_lshl_b32 s31, s27, 5')
    a('v_add_u32 v4, s31, v4')
    a('s_lshl_b32 s31, s30, 8')
    a('v_lshl_add_u32 v5, v4, 1, s31')
    a('s_lshl_b32 s31, s29, 15')
    a('s_lshl_b32 s33, s24, 5\ns_add_u32 s31, s31, s33')
    a('v_lshlrev_b32 v6, 8, v4')
    a('v_lshl_add_u32 v6, v3, 1, v6')
    a('v_add_u32 v6, s31, v6')
    a('v_add_u32 v20, 4096, v6')
    a('buffer_load_dwordx2 v[8:9], v5, s[48:51], 0 offen')
    a('buffer_load_dwordx2 v[10:11], v5, s[48:51], 0 offen offset:32')
    for j in range(8):
        a(f'buffer_load_ushort v{12+j}, v{6 if j < 4 else 20}, s[52:55], 0 offen offset:{(j&3)*256}')
    if pf:
        srd(a, 60, 44, XBYTES)
        for k in range(pf):
            a(f'buffer_load_dword v{69+k}, v68, s[60:63], 0 offen offset:{128*k}')
    a(f's_waitcnt vmcnt({pf})')
    for j in range(8):
        r = 8 + (j >> 1)
        if j & 1:
            a(f'v_and_b32 v{40+j}, 0xffff0000, v{r}')
        else:
            a(f'v_lshlrev_b32 v{40+j}, 16, v{r}')
    for j in range(8):
        a(f'v_lshlrev_b32 v{12+j}, 16, v{12+j}')
    for j in range(8):
        a(f'v_mul_f32 v{40+j}, v{40+j}, v{12+j}')
    for j in range(4):
        a(f'v_cvt_pk_bf16_f32 v{48+j}, v{40+2*j}, v{41+2*j}')
    a('s_lshl_b32 s35, s14, 10')
    a('v_lshlrev_b32 v7, 4, v1')
    a(f'buffer_store_dwordx4 v[48:51], v7, s[56:59], s35 offen {sc}')
    if stamp:
        st.names = ['start']
        st.full('hend')
        a('s_waitcnt vmcnt(0)')
    a('K1_END:')
    a('s_endpgm')
```

```python
import sys
from gen import Asm, srd, Stamp, descriptor, header, NAME, K2, K1
import gen3_k1
from gen3_k1 import NBIN, NCH, CHUNK, WS_REC, WS_TBL, WS_WF, OOB, XBYTES, WS_ST1, WS_ST2

WS_DBG = 0x1000000


class Cfg:
    def __init__(self, **kw):
        self.R = 4
        self.NMAX = 12
        self.NMIN = 9
        self.B = 2
        self.dma_first = True
        self.g2first = True
        self.stamp = False
        self.abl = ''
        self.dbg = None
        self.k1sc = 'sc0 sc1'
        self.osc = 'sc0 sc1'
        self.zero7 = True
        self.force_slow = False
        self.wpf = False
        self.stepst = -1
        self.l2pf = 0
        self.l2pos = 'rec'
        self.l2plan = [('rec', 3, 0, 41)]
        self.order = (3, 2, 4, 5, 6, 7, 0, 1)
        self.lgr = False
        self.barlate = 0
        self.prio = 0
        self.shift = 0
        self.fw64 = False
        self.soff0 = 0
        self.k1pf = 0
        self.loopdbg = False
        self.force_vg = False
        self.lastm = 0
        self.wgskip = 0
        self.xwarm = 0
        for k, v in kw.items():
            assert hasattr(self, k), k
            setattr(self, k, v)
        self.AW = 18432
        self.STG = 6144
        self.FO = 12288
        self.TBL = 0
        self.CNT = self.TBL + 8192
        self.FLAG = self.CNT + 512
        self.OFF = self.CNT + 1024
        self.AB = 10240
        self.LDS = self.AB + 8 * self.AW
        assert self.LDS <= 163840


V_LANE, V_TRL, V_FW, V_FRA, V_FRB, V_CHUNK, V_L16 = 1, 2, 6, 7, 8, 9, 10
SET = (16, 24)
G2B = 32
AGG = 48
OUT = 80
WREG = 128
COEF = 176
PA = 224
S_W = 3
SRD_X, SRD_X1, SRD_WS, SRD_OUT = 4, 8, 12, 16
S_N, S_SOFF, S_RO, S_RB, S_C0, S_CN, S_J0, S_MODE, S_MORE, S_TG = 20, 21, 22, 23, 24, 25, 26, 27, 28, 29
S_FWM = 42
S_WB = 44
S_NODE = 72
S_FT = 77
S_MASK = 78
S_PFR = 79
S_CNTB = 80
S_LASTM = 88
NREC = 10


def rec(i): return 16 + 4 * i
def la(i): return 56 + i
def offp(i): return COEF + 2 * i
V_MT = 66


G0LAST = False
def wslot(mat, Tp):
    if G0LAST:
        return {(4, 0): 0, (4, 1): 1, (2, 0): 2, (2, 1): 3, (3, 0): 4, (3, 1): 5,
                (4, 2): 6, (4, 3): 7, (2, 2): 8, (2, 3): 9, (3, 2): 10, (3, 3): 11,
                (0, 0): 0, (0, 1): 1, (1, 0): 2, (1, 1): 3, (0, 2): 6, (0, 3): 7, (1, 2): 8, (1, 3): 9}[(mat, Tp)]
    return {(0, 0): 0, (0, 1): 1, (1, 0): 2, (1, 1): 3, (0, 2): 4, (0, 3): 5, (1, 2): 6, (1, 3): 7,
            (2, 0): 8, (2, 1): 9, (3, 0): 10, (3, 1): 11, (4, 0): 0, (4, 1): 1,
            (2, 2): 2, (2, 3): 3, (3, 2): 4, (3, 3): 5, (4, 2): 6, (4, 3): 7}[(mat, Tp)]


def g2_plan(pr, c):
    g, half = c.order[pr] >> 1, c.order[pr] & 1
    sign = {(1, 2): 1, (2, 0): 1, (0, 1): 1, (2, 1): -1, (1, 0): -1, (0, 2): -1}
    def group(pp, mat, o):
        out = []
        for T in range(2):
            for nt in range(3):
                Tp = 2 * half + T
                base = V_FRA if pp < 2 else V_FRB
                off = (pp & 1) * (c.AW + 32) + T * 3072 + nt * 256
                out.append(('mm', base, off, WREG + 4 * wslot(mat, Tp), OUT + (o * 3 + nt) * 4))
        return out
    if g == 0:
        lst = group(0, 0, 0)
        for pp in range(1, 4):
            lst += group(pp, 1, pp)
        return lst
    k = g - 1
    js = [j for j in range(3) if j != k]
    state = 1 if k % 2 == 0 else -1
    first = [j for j in js if sign[(j, k)] == state][0]
    second = [j for j in js if j != first][0]
    lst = group(1 + first, 4, 1 + (3 - first - k))
    lst += group(0, 2, 1 + k)
    lst += group(1 + k, 3, 0)
    lst += [('flip', half)]
    lst += group(1 + second, 4, 1 + (3 - second - k))
    return lst


def wload(a, slot, f, tmp):
    a(f'buffer_load_dwordx4 v[{WREG+4*slot}:{WREG+4*slot+3}], v{V_L16}, s[{SRD_WS}:{SRD_WS+3}], s{tmp} offen offset:{1024*(f&3)}')


def gen_k2(a, c):
    global G0LAST
    R, B, NMAX, NMIN, AW = c.R, c.B, c.NMAX, c.NMIN, c.AW
    G0LAST = tuple(c.order) != (0, 1, 2, 3, 4, 5, 6, 7)
    assert G0LAST
    if G0LAST:
        assert sorted(c.order[:2]) == [2, 3] and tuple(c.order[2:]) == (4, 5, 6, 7, 0, 1) and not c.wpf and not c.soff0
    assert R == 4
    stp = Stamp(a, c.stamp, 50, 52)
    plan_pf = c.l2plan if c.l2plan is not None else [(c.l2pos, k, 0, 41) for k in range(c.l2pf)]
    pfregs = [11, 15, 12, 13]
    def l2at(pos):
        todo = [t for t in plan_pf if t[0] == pos]
        if not todo: return 0
        a(f's_mul_i32 s37, s{S_W}, 41\ns_add_u32 s37, s37, s{S_PFR}')
        a(f'v_add_u32 v14, s37, v{V_LANE}\nv_lshlrev_b32 v14, 10, v14')
        a(f's_mov_b32 s{SRD_X+2}, {XBYTES}')
        for (_, k, lo, hi) in todo:
            a(f's_bfm_b64 exec, {hi-lo}, {lo}')
            a(f's_mov_b32 s37, {128*k}')
            a(f'buffer_load_dword v{pfregs.pop(0)}, v14, s[{SRD_X}:{SRD_X+3}], s37 offen')
        a('s_mov_b64 exec, -1')
        return len(todo)
    l = V_LANE
    a(f'.globl {K2}\n.p2align 8\n.type {K2},@function\n{K2}:')
    a(f's_cmp_ge_u32 s2, {NBIN if not c.wgskip else 8*c.wgskip}\ns_cbranch_scc1 K2_END')
    a('s_load_dwordx2 s[30:31], s[0:1], 0')
    a('s_load_dwordx2 s[32:33], s[0:1], 72')
    a('s_load_dwordx2 s[34:35], s[0:1], 88')
    a('s_and_b32 s36, s2, 7\ns_lshr_b32 s37, s2, 3\ns_mul_i32 s38, s36, 31\ns_min_u32 s36, s36, 2')
    a(f's_mul_i32 s{S_PFR}, s37, 328')
    a('s_add_u32 s38, s38, s36\ns_add_u32 s2, s38, s37')
    a(f'v_and_b32 v{l}, 63, v0')
    a('v_lshrrev_b32 v60, 6, v0')
    a(f's_lshl_b32 s{S_TG}, s2, 2\ns_add_u32 s{S_TG}, s{S_TG}, {WS_TBL}')
    a(f'v_readfirstlane_b32 s{S_W}, v60')
    a(f's_mov_b32 s{S_C0}, 0\ns_mov_b32 s{S_CN}, {NCH}\ns_mov_b32 s{S_J0}, 0\ns_mov_b32 s{S_MODE}, 0')
    a('v_lshrrev_b32 v61, 1, v0')
    a('v_lshlrev_b32 v62, 10, v61')
    stp.issue()
    if c.stamp: a('s_memtime s[86:87]')
    a('s_waitcnt lgkmcnt(0)')
    stp.save('start')
    srd(a, SRD_WS, 34, WS_WF + 160 * 1024)
    a(f'buffer_load_dword v63, v62, s[{SRD_WS}:{SRD_WS+3}], s{S_TG} offen')
    srd(a, SRD_X, 30, XBYTES)
    nstart = l2at('start')
    a(f's_sub_u32 s{SRD_X1}, s30, 1024\ns_subb_u32 s{SRD_X1+1}, s31, 0')
    a(f's_mov_b32 s{SRD_X1+2}, {XBYTES+1024}\ns_mov_b32 s{SRD_X1+3}, 0x20000')
    srd(a, SRD_OUT, 32, XBYTES)
    a(f's_mul_i32 s{S_WB}, s{S_W}, 20480\ns_add_u32 s{S_WB}, s{S_WB}, {WS_WF}')
    a(f's_mul_i32 s{S_RB}, s{S_W}, {AW}\ns_add_u32 s{S_RB}, s{S_RB}, {c.AB}')
    a(f's_mov_b32 s{S_FT}, {4*AW}')
    a(f's_mov_b32 s{S_MASK}, 0xfffffc00')
    a(f's_mov_b32 s{S_FWM}, 0x000f000f\ns_mov_b32 s{S_FWM+1}, 0x000f000f')
    a(f'v_lshlrev_b32 v{V_L16}, 4, v{l}')
    a(f'v_and_b32 v66, 7, v{l}')
    a(f'v_bfe_u32 v67, v{l}, 4, 1')
    a('v_lshlrev_b32 v68, 2, v67\nv_xor_b32 v68, v68, v66')
    a(f'v_lshlrev_b32 v{V_CHUNK}, 4, v68')
    a(f'v_bfe_u32 v68, v{l}, 2, 2')
    a(f'v_and_b32 v69, 3, v{l}')
    a(f'v_lshrrev_b32 v70, 4, v{l}')
    a('v_lshl_add_u32 v71, v70, 3, v68')
    a('v_lshlrev_b32 v71, 7, v71')
    a('v_lshrrev_b32 v72, 1, v69')
    a('v_lshrrev_b32 v73, 1, v68\nv_lshlrev_b32 v73, 2, v73')
    a('v_xor_b32 v72, v72, v73')
    a('v_lshlrev_b32 v73, 1, v67')
    a('v_xor_b32 v72, v72, v73')
    a('v_lshl_add_u32 v71, v72, 4, v71')
    a('v_and_b32 v73, 1, v69')
    a('v_lshl_add_u32 v71, v73, 3, v71')
    a(f'v_add_u32 v{V_TRL}, s{S_RB}, v71')
    for ft in range(1, 4):
        a(f'v_xor_b32 v{V_TRL+ft}, {32*ft}, v{V_TRL}')
    a(f's_mul_i32 s39, s{S_W}, 80\ns_add_u32 s39, s39, {c.AB + c.FO}')
    a(f's_mov_b32 s40, {AW+32}')
    a('v_mul_lo_u32 v72, v69, s40')
    a('v_mul_u32_u24 v73, 768, v70')
    a('v_add3_u32 v72, v72, v73, s39')
    a(f'v_lshl_add_u32 v{V_FW}, v68, 4, v72')
    a(f'v_lshrrev_b32 v72, 4, v{l}\nv_mul_u32_u24 v72, 768, v72')
    a(f'v_and_b32 v73, 15, v{l}')
    a('v_lshl_add_u32 v72, v73, 4, v72')
    a(f'v_add_u32 v{V_FRA}, {c.AB + c.FO}, v72')
    a(f'v_add_u32 v{V_FRB}, {c.AB + c.FO + 2*(AW+32)}, v72')
    for i in range(0, 48, 2):
        a(f'v_mov_b64 v[{OUT+i}:{OUT+i+1}], 0')
    a('K2_ROUND:')
    a('v_mov_b64 v[68:69], 0\nv_mov_b64 v[70:71], 0')
    a(f'v_mov_b32 v72, {OOB}\nv_mov_b32 v73, {OOB}\nv_mov_b32 v74, {OOB}\nv_mov_b32 v75, {OOB}')
    a(f'v_add_u32 v76, s{S_RB}, v{V_L16}')
    for k in range(12):
        a(f'ds_write_b128 v76, v[68:71] offset:{c.STG + 1024*k}')
    a(f's_lshl_b32 s38, s{S_W}, 10\ns_add_u32 s38, s38, {c.TBL}')
    a(f'v_add_u32 v77, s38, v{V_L16}')
    a('ds_write_b128 v77, v[72:75]')
    a(f's_cmp_lg_u32 s{S_W}, 0\ns_cbranch_scc1 K2_I1')
    a(f'v_add_u32 v77, {c.CNT}, v{V_L16}')
    a('ds_write_b128 v77, v[68:71]')
    a('K2_I1:')
    a('s_waitcnt vmcnt(0)' if not nstart else f's_waitcnt vmcnt({nstart})')
    stp.full('tbl_arr')
    l2at('tbl')
    a('v_lshrrev_b32 v61, 1, v0')
    a('v_and_b32 v62, 1, v0')
    a(f'v_add_u32 v64, s{S_C0}, v61')
    a(f'v_cmp_gt_u32 vcc, s{S_CN}, v61')
    a(f's_mov_b32 s45, {NCH}')
    a('v_cmp_gt_u32 s[40:41], s45, v64')
    a('s_nop 1')
    a('s_and_b64 vcc, vcc, s[40:41]')
    a('v_cndmask_b32 v63, 0, v63, vcc')
    a('v_lshrrev_b32 v65, 16, v63')
    a('v_and_b32 v67, 0xffff, v63')
    a(f'v_subrev_u32 v65, s{S_J0}, v65')
    a('v_max_i32 v65, 0, v65')
    a(f'v_min_u32 v{V_MT}, 20, v65')
    a(f'v_sub_u32 v{V_MT}, v{V_MT}, v62')
    a(f'v_add_u32 v{V_MT}, 1, v{V_MT}')
    a(f'v_lshrrev_b32 v{V_MT}, 1, v{V_MT}')
    a(f'v_mul_u32_u24 v64, {CHUNK}, v64')
    a(f'v_add3_u32 v64, v64, v67, s{S_J0}')
    a('v_add_u32 v64, v64, v62')
    a('v_mul_u32_u24 v64, 12, v64')
    for i in range(NREC):
        a(f'v_cmp_lt_u32 vcc, {i}, v{V_MT}')
        a('s_and_b64 exec, exec, vcc')
        a('s_cbranch_execz K2_LD_DONE')
        a(f'buffer_load_dwordx3 v[{rec(i)}:{rec(i)+2}], v64, s[{SRD_WS}:{SRD_WS+3}], 0 offen offset:{24*i}')
    a('K2_LD_DONE:')
    a('s_mov_b64 exec, -1')
    if G0LAST:
        a(f's_add_u32 s37, s{S_WB}, 16384\ns_add_u32 s38, s{S_WB}, 8192\ns_add_u32 s39, s{S_WB}, 12288')
        for slot, f in enumerate((16, 17, 8, 9, 12, 13, 18, 19, 10, 11, 14, 15)):
            wload(a, slot, f, (None, None, 38, 39, 37)[f >> 2])
    else:
        a(f's_add_u32 s37, s{S_WB}, 4096\ns_add_u32 s38, s{S_WB}, 8192\ns_add_u32 s39, s{S_WB}, 12288')
        for slot, f in enumerate((0, 1, 4, 5, 2, 3, 6, 7, 8, 9, 12, 13)):
            wload(a, slot, f, (S_WB, 37, 38, 39)[f >> 2])
    nx = l2at('recq')
    if c.wpf:
        a(f'v_lshrrev_b32 v11, 4, v{l}\nv_min_u32 v11, 1, v11\nv_lshlrev_b32 v11, 11, v11')
        a(f'v_lshl_add_u32 v11, v{l}, 7, v11')
        a(f's_add_u32 s37, s{S_WB}, 10240')
        a(f'buffer_load_dword v11, v11, s[{SRD_WS}:{SRD_WS+3}], s37 offen')
        nx += 1
    if c.xwarm:
        a(f's_mul_i32 s37, s2, 320\ns_mul_i32 s38, s{S_W}, 40\ns_add_u32 s37, s37, s38\ns_lshl_b32 s37, s37, 7')
        a(f'v_lshlrev_b32 v14, 7, v{l}')
        a(f's_mov_b32 s{SRD_X+2}, {XBYTES}')
        a('s_bfm_b64 exec, 40, 0')
        a(f'buffer_load_dword v14, v14, s[{SRD_X}:{SRD_X+3}], s37 offen')
        a('s_mov_b64 exec, -1')
        nx += 1
    a('v_mov_b32 v68, 1')
    a('s_waitcnt lgkmcnt(0)')
    a('s_barrier')
    a('v_cmp_lt_u32 vcc, 20, v65')
    a('s_and_saveexec_b64 s[40:41], vcc')
    a('s_cbranch_execz K2_NOMORE')
    a(f'v_mov_b32 v69, {c.FLAG}')
    a('ds_write_b32 v69, v68')
    a('K2_NOMORE:')
    a('s_mov_b64 exec, s[40:41]')
    a(f's_waitcnt vmcnt({12+nx})')
    stp.full('rec_arr')
    l2at('rec')
    for i in range(NREC):
        a(f'v_cmp_lt_u32 vcc, {i}, v{V_MT}')
        a('s_and_b64 exec, exec, vcc')
        a('s_cbranch_execz K2_RK_DONE')
        a(f'v_and_b32 v{la(i)}, 0x3f8, v{rec(i)+2}')
        a(f'ds_add_rtn_u32 v{rec(i)+3}, v{la(i)}, v68 offset:{c.CNT}')
    a('K2_RK_DONE:')
    a('s_mov_b64 exec, -1')
    a(f'v_lshrrev_b32 v70, 3, v{l}')
    a(f'v_and_b32 v71, 7, v{l}')
    a(f's_mov_b32 s45, {AW}')
    a('v_mul_lo_u32 v72, v70, s45')
    a('s_mov_b32 s45, 0x76532104')
    a('v_lshlrev_b32 v71, 2, v71')
    a('v_bfe_u32 v71, s45, v71, 3')
    a('v_lshl_add_u32 v72, v71, 3, v72')
    a(f'v_add_u32 v72, {c.AB + c.STG}, v72')
    a('v_lshlrev_b32 v73, 10, v70')
    a(f'v_add_u32 v73, {c.TBL}, v73')
    a(f'v_lshlrev_b32 v67, 3, v{l}')
    a(f'v_mov_b32 v69, {c.FLAG}')
    a('s_waitcnt lgkmcnt(0)')
    a('s_barrier')
    stp.full('rank_bar')
    l2at('rank')
    a(f'ds_read_b32 v68, v67 offset:{c.CNT}')
    a('ds_read_b32 v70, v69')
    a(f'v_cmp_gt_u32 vcc, 40, v{l}')
    a(f's_cmp_eq_u32 s{S_MODE}, 0')
    a('s_waitcnt lgkmcnt(0)')
    a(f'v_readfirstlane_b32 s{S_MORE}, v70')
    a('s_cbranch_scc0 K2_IDENT')
    if c.force_slow:
        a('s_branch K2_FALLBACK')
    a(f's_cmp_lg_u32 s{S_MORE}, 0\ns_cbranch_scc1 K2_FALLBACK')
    T0 = 196
    a('v_med3_u32 v71, v68, 17, 47')
    a('v_subrev_u32 v71, 16, v71')
    a('v_cndmask_b32 v71, 0, v71, vcc')
    for b in range(5):
        a(f'v_bfe_i32 v{T0+b}, v71, {b}, 1')
    MS = [36, 38, 40, 46, 48]
    for b in range(5):
        a(f'v_cmp_ne_u32_e64 s[{MS[b]}:{MS[b]+1}], 0, v{T0+b}')
    a('s_nop 1')
    GL, GH, EL, EH, UL, UH = 201, 202, 203, 204, 205, 206
    for b in (4, 3, 2, 1, 0):
        m, t = MS[b], T0 + b
        if b == 4:
            a(f'v_bfi_b32 v{GL}, v{t}, 0, s{m}')
            a(f'v_bfi_b32 v{GH}, v{t}, 0, s{m+1}')
            a(f'v_xnor_b32 v{EL}, s{m}, v{t}')
            a(f'v_xnor_b32 v{EH}, s{m+1}, v{t}')
        else:
            a(f'v_bfi_b32 v{UL}, v{t}, 0, s{m}')
            a(f'v_bfi_b32 v{UH}, v{t}, 0, s{m+1}')
            a(f'v_and_or_b32 v{GL}, v{EL}, v{UL}, v{GL}')
            a(f'v_and_or_b32 v{GH}, v{EH}, v{UH}, v{GH}')
            a(f'v_bitop3_b32 v{EL}, v{EL}, s{m}, v{t} bitop3:0x90')
            a(f'v_bitop3_b32 v{EH}, v{EH}, s{m+1}, v{t} bitop3:0x90')
    a(f'v_bcnt_u32_b32 v71, v{GL}, 0')
    a(f'v_bcnt_u32_b32 v71, v{GH}, v71')
    a(f'v_mbcnt_lo_u32_b32 v71, v{EL}, v71')
    a(f'v_mbcnt_hi_u32_b32 v71, v{EH}, v71')
    a('v_bfe_i32 v74, v71, 3, 1')
    a('v_xor_b32 v74, v71, v74')
    a('v_and_b32 v74, 7, v74')
    a('v_lshrrev_b32 v71, 1, v71\nv_and_b32 v71, 0x1c, v71')
    a('s_mov_b32 s45, 0x76501234')
    a('v_bfe_u32 v71, s45, v71, 3')
    a('v_lshl_add_u32 v71, v74, 3, v71')
    a('s_branch K2_PERM')
    a('K2_IDENT:')
    a(f'v_mul_u32_u24 v71, 52, v{l}\nv_lshrrev_b32 v71, 8, v71')
    a(f'v_mad_u32_u24 v71, v71, 3, v{l}')
    a(f'v_subrev_u32 v74, 40, v{l}')
    a('v_mul_u32_u24 v75, 86, v74\nv_lshrrev_b32 v75, 8, v75')
    a('v_mad_u32_u24 v75, v75, 5, v74')
    a('v_add_u32 v75, 5, v75')
    a('v_cndmask_b32 v71, v75, v71, vcc')
    a('K2_PERM:')
    a('v_lshlrev_b32 v71, 2, v71')
    a(f'v_lshl_or_b32 v74, v{l}, 16, v68')
    a('ds_permute_b32 v75, v71, v74')
    a('s_waitcnt lgkmcnt(0)')
    a('v_and_b32 v76, 0xffff, v75')
    a('v_mov_b32 v77, v76')
    a('s_nop 1')
    a('v_add_u32_dpp v77, v77, v77 row_shr:1 row_mask:0xf bank_mask:0xf')
    a('s_nop 1')
    a('v_add_u32_dpp v77, v77, v77 row_shr:2 row_mask:0xf bank_mask:0xf')
    a('s_nop 1')
    a('v_add_u32_dpp v77, v77, v77 row_shr:4 row_mask:0xf bank_mask:0xa')
    a(f's_mov_b32 s45, {16*NMAX}')
    a('v_cmp_lt_u32 vcc, s45, v77')
    a('v_sub_u32 v78, v77, v76')
    a(f's_lshl_b32 s46, s{S_W}, 3')
    a(f'v_readlane_b32 s{S_CNTB}, v76, s46')
    a(f's_cmp_eq_u32 s{S_MODE}, 0\ns_cbranch_scc0 K2_GO')
    a('s_cmp_lg_u64 vcc, 0\ns_cbranch_scc1 K2_FALLBACK')
    a('K2_GO:')
    a('v_lshl_add_u32 v72, v78, 6, v72')
    a('v_lshl_add_u32 v73, v78, 2, v73')
    a('v_lshrrev_b32 v74, 16, v75')
    a('v_lshlrev_b32 v76, 3, v74')
    a(f'ds_write_b64 v76, v[72:73] offset:{c.OFF}')
    a('s_add_u32 s47, s46, 7')
    a(f'v_readlane_b32 s{S_N}, v77, s47')
    for q in range(5):
        if q: a('s_add_u32 s46, s46, 1')
        a(f'v_readlane_b32 s{S_NODE+q}, v74, s46')
    a('s_waitcnt lgkmcnt(0)')
    for i in range(NREC):
        a(f'v_cmp_lt_u32 vcc, {i}, v{V_MT}')
        a('s_and_b64 exec, exec, vcc')
        a('s_cbranch_execz K2_OF_DONE')
        a(f'ds_read_b64 v[{offp(i)}:{offp(i)+1}], v{la(i)} offset:{c.OFF}')
    a('K2_OF_DONE:')
    a('s_mov_b64 exec, -1')
    a('s_mul_i32 s45, s2, 40')
    for q in range(5):
        a(f's_add_u32 s{S_NODE+q}, s{S_NODE+q}, s45\ns_lshl_b32 s{S_NODE+q}, s{S_NODE+q}, 10')
    a('s_waitcnt lgkmcnt(0)')
    for i in range(NREC):
        a(f'v_cmp_lt_u32 vcc, {i}, v{V_MT}')
        a('s_and_b64 exec, exec, vcc')
        a('s_cbranch_execz K2_SC_DONE')
        a(f'v_lshl_add_u32 v{offp(i)}, v{rec(i)+3}, 6, v{offp(i)}')
        a(f'v_lshl_add_u32 v{offp(i)+1}, v{rec(i)+3}, 2, v{offp(i)+1}')
        a(f'ds_write_b64 v{offp(i)}, v[{rec(i)}:{rec(i)+1}]')
        a(f'ds_write_b32 v{offp(i)+1}, v{rec(i)+2}')
    a('K2_SC_DONE:')
    a('s_mov_b64 exec, -1')
    a(f's_lshl_b32 s38, s{S_W}, 10\ns_add_u32 s38, s38, {c.TBL}')
    a(f'v_lshrrev_b32 v67, 3, v{l}')
    a('v_lshl_add_u32 v67, v67, 2, s38')
    a(f'v_bfe_u32 v68, v{l}, 2, 2')
    a(f'v_lshrrev_b32 v70, 4, v{l}')
    a('v_lshl_add_u32 v68, v70, 3, v68')
    a('v_lshlrev_b32 v68, 6, v68')
    a(f'v_and_b32 v69, 3, v{l}')
    a('v_lshl_add_u32 v68, v69, 3, v68')
    a(f's_add_u32 s38, s{S_RB}, {c.STG}')
    a('v_add_u32 v68, s38, v68')
    a(f'v_xor_b32 v66, 32, v{V_CHUNK}')
    a(f's_mov_b32 s{S_SOFF}, {128*c.order[0]}')
    a(f's_mov_b32 s{SRD_X+2}, {XBYTES}\ns_mov_b32 s{SRD_X1+2}, {XBYTES+1024}')
    a(f's_mov_b32 m0, s{S_RB}')
    a('s_waitcnt lgkmcnt(0)')
    a('s_barrier')
    stp.full('scat_bar')
    l2at('scat')
    if c.dbg == 'pro':
        dump_lds(a, c)
        return
    PI = 16
    for t in range(4):
        a(f'ds_read2_b32 v[{PI+2*t}:{PI+2*t+1}], v67 offset0:{16*t} offset1:{16*t+8}')
    for cc in range(8):
        t = cc + 4
        a(f'ds_read2_b32 v[{PA+2*cc}:{PA+2*cc+1}], v67 offset0:{16*t} offset1:{16*t+8}')
    a('s_waitcnt lgkmcnt(8)')
    for t in range(4):
        a(f'v_and_or_b32 v{PI+2*t}, v{PI+2*t}, s{S_MASK}, v{V_CHUNK}')
        a(f'v_and_or_b32 v{PI+2*t+1}, v{PI+2*t+1}, s{S_MASK}, v66')
        if t == 3: continue
        if t: a(f's_add_u32 m0, s{S_RB}, {2048*t}')
        if t: a('s_nop 0')
        a(f'buffer_load_dwordx4 v{PI+2*t}, s[{SRD_X}:{SRD_X+3}], s{S_SOFF} offen lds')
        a(f'buffer_load_dwordx4 v{PI+2*t+1}, s[{SRD_X1}:{SRD_X1+3}], s{S_SOFF} offen offset:1024 lds')
    a(f's_add_u32 m0, s{S_RB}, 6144')
    a('s_waitcnt lgkmcnt(0)')
    CB = COEF + 24
    def coefread(j, tile):
        r = (COEF, CB)[tile] + 4 * j
        a(f'ds_read_b64_tr_b16 v[{r}:{r+1}], v68 offset:{2048*j + 32*tile}')
        a(f'ds_read_b64_tr_b16 v[{r+2}:{r+3}], v68 offset:{2048*j + 32*tile + 256}')
    coefread(0, 1)
    for j in range(6):
        coefread(j, 0)
    for i in range(16):
        a(f'v_and_or_b32 v{PA+i}, v{PA+i}, s{S_MASK}, v{V_CHUNK if i % 2 == 0 else 66}')
    if 'zcoef' in c.abl:
        a('s_waitcnt lgkmcnt(0)')
        for i in range(48): a(f'v_mov_b32 v{COEF+i}, 0')
    if c.prio:
        a(f's_cmp_ge_u32 s{S_W}, 4\ns_cbranch_scc{0 if c.prio == 1 else 1} K2_PRIO\ns_setprio 1\nK2_PRIO:')
    if c.lastm:
        a(f's_sub_u32 s45, s{S_N}, 1\ns_and_b32 s45, s45, 31\ns_cmp_ge_u32 s45, 16')
        a(f's_cselect_b64 s[{S_LASTM}:{S_LASTM+1}], -1, 0')
        a(f's_cmp_le_u32 s{S_N}, 128\ns_cselect_b64 s[{S_LASTM}:{S_LASTM+1}], 0, s[{S_LASTM}:{S_LASTM+1}]')
    if c.force_vg:
        a('s_branch K2_VG')
    a(f's_cmp_gt_u32 s{S_CNTB}, 32\ns_cbranch_scc1 K2_VG')
    a(f's_cmp_gt_u32 s{S_N}, 160\ns_cbranch_scc1 K2_V6')

    def flip(half):
        base = WREG + (0 if half == 0 else 24)
        for i in range(8):
            a(f'v_xor_b32 v{base+i}, 0x80008000, v{base+i}')

    def batches(pr):
        plan = g2_plan(pr, c)
        bt, cur = [], []
        for t in plan:
            if t[0] == 'flip':
                cur.append(t)
                continue
            if sum(1 for x in cur if x[0] == 'mm') == 4:
                bt.append(cur); cur = []
            cur.append(t)
        bt.append(cur)
        assert len(bt) == 6
        return bt

    def fwrite(p):
        if 'nofw' in c.abl: return
        for i in range(16):
            if 'nocvt' in c.abl: continue
            a(f'v_cvt_pk_bf16_f32 v{G2B+i}, v{AGG+2*i}, v{AGG+2*i+1}')
        for T in range(2):
            if 'nowr' in c.abl: continue
            a(f'ds_write_b128 v{V_FW}, v[{G2B+4*T}:{G2B+4*T+3}] offset:{T*3072 + 16}')
        a(f's_mov_b64 exec, s[{S_FWM}:{S_FWM+1}]')
        for T in range(2):
            if 'nowr' in c.abl: continue
            a(f'ds_write_b128 v{V_FW}, v[{G2B+8+4*T}:{G2B+8+4*T+3}] offset:{T*3072}')
        a('s_mov_b64 exec, -1')
        a(f'v_{"add" if p % 2 == 0 else "subrev"}_u32 v{V_FW}, s{S_FT}, v{V_FW}')

    def version(tag, N, ball):
        U = 2 * N
        names0 = list(stp.names)
        def dest(p, h):
            return ((p * N + (h >> 1)) % 3) * 4096 + (h & 1) * 2048
        def target(p, u):
            h = u + 4
            return (p, h) if h < U else (p + 1, h - U)
        def back(u):
            if 'noback' in c.abl: return
            j, t = u >> 1, u & 1
            s = SET[u & 1]
            tiles = (0, 1) if (j == 0 or ball) else (0,)
            for tile in tiles:
                for f in range(2):
                    d = AGG + 16 * tile + 4 * (2 * t + f)
                    src = f'v[{d}:{d+3}]' if j else '0'
                    b = (COEF, CB)[tile] + 4 * j
                    a(f'v_mfma_f32_16x16x32_bf16 v[{d}:{d+3}], v[{s+4*f}:{s+4*f+3}], v[{b}:{b+3}], {src}')
        def unit(p, u):
            j, t = u >> 1, u & 1
            g2 = p > 0 and 'nog2' not in c.abl
            bt = batches(p - 1) if p > 0 else None
            mark = len(a.L)
            wl = p in (6, 7)
            if u == 0: stp.issue()
            if u == 0 and p == 0 and c.stamp: a('s_memtime s[82:83]')
            if t == 0:
                nv = 4
                if p == 7 and u == U - 2: nv = 0
                if wl and u == 2: nv += 4
                a(f's_waitcnt vmcnt({nv}) lgkmcnt(0)')
            else:
                a('s_waitcnt lgkmcnt(0)')
            if u == 0: stp.save(f'ph{p}')
            if u == B and 'nobar' not in c.abl:
                a('s_barrier')
            tp, th = target(p, u)
            if tp < 8:
                if u == U - 4:
                    a(f's_mov_b32 s{S_SOFF}, {128*c.order[p+1]}')
                if 'nodma' not in c.abl:
                    lastm = c.lastm and tp == p and th == U - 1 and not ball
                    if lastm: a(f's_mov_b64 exec, s[{S_LASTM}:{S_LASTM+1}]')
                    a(f'buffer_load_dwordx4 v{PA+2*u}, s[{SRD_X}:{SRD_X+3}], s{S_SOFF} offen lds')
                    a(f'buffer_load_dwordx4 v{PA+2*u+1}, s[{SRD_X1}:{SRD_X1+3}], s{S_SOFF} offen offset:1024 lds')
                    if lastm: a('s_mov_b64 exec, -1')
            if 'notr' not in c.abl:
                st = SET[u & 1]
                slot = (p * N + j) % 3
                for f in range(2):
                    for h in range(2):
                        a(f'ds_read_b64_tr_b16 v[{st+4*f+2*h}:{st+4*f+2*h+1}], v{V_TRL+2*t+f} offset:{slot*4096 + 512*h}')
            def m0next():
                np_, nu = (p, u + 1) if u + 1 < U else (p + 1, 0)
                if np_ > 7: return
                tp2, th2 = target(np_, nu)
                if tp2 > 7: return
                a(f's_add_u32 m0, s{S_RB}, {dest(tp2, th2)}')
            if u == 0:
                if wl:
                    a(f's_add_u32 s37, s{S_WB}, 4096')
                    if p == 6:
                        wload(a, 0, 0, S_WB); wload(a, 1, 1, S_WB); wload(a, 2, 4, 37); wload(a, 3, 5, 37)
                    else:
                        wload(a, 6, 2, S_WB); wload(a, 7, 3, S_WB); wload(a, 8, 6, 37); wload(a, 9, 7, 37)
                m0next()
                if p > 0:
                    n = len(a.L) - mark + 1
                    if n < 10:
                        a(f's_nop {9 - n}')
                    fwrite(p - 1)
                return
            if u == 1 and p >= 2:
                op = 'add' if p % 2 == 0 else 'subrev'
                a(f'v_{op}_u32 v{V_FRA}, s{S_FT}, v{V_FRA}')
                a(f'v_{op}_u32 v{V_FRB}, s{S_FT}, v{V_FRB}')
            if g2 and B + 1 <= u <= B + 6:
                n = 0
                for x in bt[u - B - 1]:
                    if x[0] == 'flip':
                        continue
                    a(f'v_mfma_f32_16x16x32_bf16 v[{x[4]}:{x[4]+3}], v[{x[3]}:{x[3]+3}], v[{G2B+4*n}:{G2B+4*n+3}], v[{x[4]}:{x[4]+3}]')
                    n += 1
            if g2 and B <= u <= B + 5:
                n = 0
                for x in bt[u - B]:
                    if x[0] == 'flip':
                        continue
                    a(f'ds_read_b128 v[{G2B+4*n}:{G2B+4*n+3}], v{x[1]} offset:{x[2]}')
                    n += 1
            back(u - 1)
            if g2 and c.order[p - 1] >= 2 and u == B + 3 and 'noflip' not in c.abl:
                flip(c.order[p - 1] & 1)
            m0next()

        a(f'K2_V{tag}:')
        if ball:
            a('s_waitcnt lgkmcnt(0)')
            for j in range(1, 6):
                coefread(j, 1)
        for i in range(8):
            a(f'v_mov_b32 v{PA+2*(U-4)+i}, v{PI+i}')
        a('s_waitcnt lgkmcnt(0)')
        a(f'buffer_load_dwordx4 v{PI+6}, s[{SRD_X}:{SRD_X+3}], s{S_SOFF} offen lds')
        a(f'buffer_load_dwordx4 v{PI+7}, s[{SRD_X1}:{SRD_X1+3}], s{S_SOFF} offen offset:1024 lds')
        a(f's_add_u32 m0, s{S_RB}, {dest(*target(0, 0))}')
        for _ in range(c.shift): a('s_nop 0')
        for p in range(8):
            a(f'; ---------------- version {tag} phase {p}')
            for u in range(U):
                unit(p, u)
            a('s_waitcnt lgkmcnt(0)')
            back(U - 1)
        if tag != 'G':
            a('s_branch K2_TAIL')
        names = list(stp.names)
        stp.names = names0
        return names

    version('5', 5, False)
    version('6', 6, False)
    stp.names = version('G', 6, True)
    a('K2_TAIL:')
    stp.issue()
    if c.stamp: a('s_memtime s[84:85]')
    a('s_nop 7\ns_nop 3')
    if c.stamp:
        a('s_waitcnt lgkmcnt(0)')
    stp.save('tail')
    fwrite(7)
    for op in ('add',):
        a(f'v_{op}_u32 v{V_FRA}, s{S_FT}, v{V_FRA}')
        a(f'v_{op}_u32 v{V_FRB}, s{S_FT}, v{V_FRB}')
    a('s_waitcnt vmcnt(0) lgkmcnt(0)')
    a('s_barrier')
    plan = g2_plan(7, c)
    regs = [COEF + 4 * i for i in range(12)] + [AGG + 4 * i for i in range(8)] + [SET[0] + 4 * i for i in range(4)]
    mm = [t for t in plan if t[0] == 'mm']
    fl = ([i for i, t in enumerate(plan) if t[0] == 'flip'] + [1000])[0]
    def rd(n): a(f'ds_read_b128 v[{regs[n]}:{regs[n]+3}], v{mm[n][1]} offset:{mm[n][2]}')
    for n in range(12): rd(n)
    for n in range(24):
        if n == fl - 6:
            flip(1)
        a(f's_waitcnt lgkmcnt({11 if n < 12 else 23 - n})')
        t = mm[n]
        a(f'v_mfma_f32_16x16x32_bf16 v[{t[4]}:{t[4]+3}], v[{t[3]}:{t[3]+3}], v[{regs[n]}:{regs[n]+3}], v[{t[4]}:{t[4]+3}]')
        if n < 12: rd(12 + n)
    a(f'v_subrev_u32 v{V_FRA}, s{S_FT}, v{V_FRA}')
    a(f'v_subrev_u32 v{V_FRB}, s{S_FT}, v{V_FRB}')
    a(f's_cmp_eq_u32 s{S_MODE}, 0\ns_cbranch_scc1 K2_EPI')
    a(f's_cmp_lg_u32 s{S_MORE}, 0\ns_cbranch_scc0 K2_NEXTC')
    a(f's_add_u32 s{S_J0}, s{S_J0}, 20')
    a('s_branch K2_RELOAD')
    a('K2_NEXTC:')
    a(f's_mov_b32 s{S_J0}, 0')
    a(f's_add_u32 s{S_C0}, s{S_C0}, s{S_CN}')
    a(f's_cmp_ge_u32 s{S_C0}, {NCH}\ns_cbranch_scc1 K2_EPI')
    a('s_branch K2_RELOAD')
    a('K2_FALLBACK:')
    a(f's_mov_b32 s{S_MODE}, 1\ns_mov_b32 s{S_CN}, 9\ns_mov_b32 s{S_C0}, 0\ns_mov_b32 s{S_J0}, 0')
    a('K2_RELOAD:')
    a('s_waitcnt vmcnt(0) lgkmcnt(0)')
    a('s_barrier')
    a('v_lshrrev_b32 v61, 1, v0')
    a(f'v_add_u32 v61, s{S_C0}, v61')
    a('v_min_u32 v61, 255, v61')
    a('v_lshlrev_b32 v62, 10, v61')
    a(f'buffer_load_dword v63, v62, s[{SRD_WS}:{SRD_WS+3}], s{S_TG} offen')
    a('s_waitcnt vmcnt(0)')
    a('s_branch K2_ROUND')
    a('K2_EPI:')
    stp.full('epi')
    a('s_nop 7')
    a(f'v_and_b32 v12, 15, v{l}\nv_lshrrev_b32 v13, 4, v{l}')
    a('v_mul_u32_u24 v12, 1040, v12')
    a('v_lshl_add_u32 v12, v13, 3, v12')
    a(f's_lshl_b32 s37, s{S_W}, 5')
    a('v_add_u32 v12, s37, v12')
    a(f's_mul_i32 s37, s{S_W}, {5*1040}')
    a(f'v_add_u32 v13, s37, v{V_L16}')
    a('s_mov_b32 s45, 0xbfb8aa3b')
    for nt in range(3):
        g = 20 + 4 * nt
        for r in range(4):
            a(f'v_mul_f32 v{g+r}, s45, v{OUT + nt*4 + r}')
        for r in range(4):
            a(f'v_exp_f32 v{g+r}, v{g+r}')
        a('s_nop 0')
        for r in range(4):
            a(f'v_add_f32 v{g+r}, 1.0, v{g+r}')
        for r in range(4):
            a(f'v_rcp_f32 v{g+r}, v{g+r}')
    a('s_nop 0')
    tmp = 32
    for nt in range(3):
        g = 20 + 4 * nt
        for o in range(4):
            q = OUT + (o * 3 + nt) * 4
            if o:
                for r in range(4):
                    a(f'v_mul_f32 v{q+r}, v{q+r}, v{g+r}')
            a(f'v_cvt_pk_bf16_f32 v{tmp}, v{q}, v{q+1}')
            a(f'v_cvt_pk_bf16_f32 v{tmp+1}, v{q+2}, v{q+3}')
            a(f'ds_write_b64 v12, v[{tmp}:{tmp+1}] offset:{nt*16640 + o*256}')
            tmp += 2
    a('s_waitcnt lgkmcnt(0)')
    a('s_barrier')
    for q in range(5):
        a(f'ds_read_b128 v[{64+4*q}:{67+4*q}], v13 offset:{1040*q}')
    for q in range(5):
        a(f's_waitcnt lgkmcnt({4-q})')
        a(f'buffer_store_dwordx4 v[{64+4*q}:{67+4*q}], v{V_L16}, s[{SRD_OUT}:{SRD_OUT+3}], s{S_NODE+q} offen {c.osc}')
    stp.full('st_issued')
    if c.stamp:
        a('s_waitcnt vmcnt(0)')
        stp.full('end')
        a(f's_mov_b32 s{stp.base+len(stp.names)}, s{S_N}')
        stp.names.append('N')
        a(f's_mov_b32 s{stp.base+len(stp.names)}, s{S_MODE}')
        stp.names.append('mode')
        a(f's_sub_u32 s{stp.base+len(stp.names)}, s84, s82')
        stp.names.append('cyc')
        a(f's_sub_u32 s{stp.base+len(stp.names)}, s82, s86')
        stp.names.append('cyc0')
        print('K2 stamps:', stp.names)
    if c.stepst >= 0:
        a(f's_add_u32 s96, s34, {WS_DBG}\ns_addc_u32 s97, s35, 0\ns_mov_b32 s98, {256*8*256}\ns_mov_b32 s99, 0x20000')
        a(f's_lshl_b32 s90, s2, 3\ns_add_u32 s90, s90, s{S_W}\ns_lshl_b32 s90, s90, 8')
        a(f'v_mov_b32 v2, s{S_N}\nv_writelane_b32 v248, s{S_N}, 63')
        a(f'v_lshlrev_b32 v3, 2, v{V_LANE}')
        a('buffer_store_dword v248, v3, s[96:99], s90 offen')
        a('s_waitcnt vmcnt(0)')
    stp.dump(34, WS_ST2, S_W, 8, 96)
    a('K2_END:')
    a('s_endpgm')


def dump_lds(a, c):
    n = (c.LDS + 8191) // 8192
    a('s_waitcnt lgkmcnt(0)\ns_barrier')
    a(f's_mul_i32 s36, s2, {n*8192}')
    a(f's_add_u32 s30, s34, {WS_DBG}\ns_addc_u32 s31, s35, 0')
    srd(a, 80, 30, 250 * n * 8192)
    a('v_lshlrev_b32 v60, 4, v0')
    for k in range(n):
        a(f'v_add_u32 v61, {k*8192}, v60')
        if (k + 1) * 8192 > c.LDS:
            a(f'v_min_u32 v61, {c.LDS-16}, v61')
        a('ds_read_b128 v[64:67], v61')
        a('s_waitcnt lgkmcnt(0)')
        a('buffer_store_dwordx4 v[64:67], v60, s[80:83], s36 offen')
        a('s_add_u32 s36, s36, 8192')
        a('s_nop 1')
    a('s_waitcnt vmcnt(0)')
    a('K2_END:')
    a('s_endpgm')


def build(**kw):
    c = Cfg(**kw)
    a = Asm()
    hdr = header()
    hdr.append(f'; @launch kernel={K1} grid=({gen3_k1.K1_GRID},1,1) block=(320,1,1) lds={gen3_k1.K1_LDS}')
    hdr.append(f'; @launch kernel={K2} grid=({NBIN},1,1) block=(512,1,1) lds={c.LDS}')
    a.L += hdr
    a.L.append('.amdgcn_target "amdgcn-amd-amdhsa--gfx950"')
    a.L.append('.text')
    gen_k2(a, c)
    gen3_k1.gen_k1(a, stamp=c.stamp, sc=c.k1sc, pf=c.k1pf)
    a.L.append('.section .rodata,"a"')
    a.L.append('.p2align 6')
    txt = a.text() + descriptor(K2, 256, 102) + '.p2align 6\n' + descriptor(K1, 72 + (4 if c.k1pf else 0), 102 if c.stamp else 64)
    return txt, c


if __name__ == '__main__':
    kw = eval('dict(' + (sys.argv[2] if len(sys.argv) > 2 else '') + ')')
    txt, c = build(**kw)
    out = sys.argv[1]
    open(out, 'w').write(txt)
    print('written', out, 'LDS', c.LDS, 'lines', txt.count('\n'))
```

```python
from gen import Asm, srd, Stamp, descriptor, header, NAME, K2, K1

NBIN = 250
NCH = 250
CHUNK = 1280
WS_REC = 0
WS_TBL = 0x400000
WS_WF = 0x480000
OOB = 0x7F000000
XBYTES = 10240000
WS_ST1 = 0x900000
WS_ST2 = 0xA00000
K1_GRID = NCH + 32
K1_LDS = 2048 + CHUNK * 12


def gen_k1(a, stamp=False, sc='sc0 sc1', old=False, pf=0, nbin=250):
    st = Stamp(a, stamp, 62, 64)
    HIST, OFF, STG = 0, 1024, 2048
    a(f'.globl {K1}\n.p2align 8\n.type {K1},@function\n{K1}:')
    a(f's_cmp_ge_u32 s2, {K1_GRID}\ns_cbranch_scc1 K1_END')
    a('s_load_dwordx4 s[4:7], s[0:1], 8')
    a('s_load_dwordx4 s[8:11], s[0:1], 24')
    a('s_load_dwordx2 s[12:13], s[0:1], 88')
    if pf:
        a('s_load_dwordx2 s[44:45], s[0:1], 0')
        a('s_lshr_b32 s56, s2, 3\ns_mul_i32 s56, s56, 320')
        a('v_add_u32 v68, s56, v0\nv_lshlrev_b32 v68, 10, v68')
    def prefetch():
        if not pf: return
        srd(a, 44, 44, XBYTES)
        for k in range(pf):
            a(f'buffer_load_dword v{69+k}, v68, s[44:47], 0 offen offset:{128*k}')
    st.full('start')
    a('v_lshrrev_b32 v1, 6, v0')
    a(f's_cmp_ge_u32 s2, {NCH}\ns_cbranch_scc1 K1_FOLD')
    a('v_readfirstlane_b32 s3, v1')
    a(f's_mul_i32 s14, s2, {CHUNK}')
    a('v_lshlrev_b32 v1, 2, v0')
    a('v_add_u32 v1, s14, v1')
    a('v_lshlrev_b32 v2, 2, v1')
    a('v_mul_u32_u24 v3, 6, v1')
    a('v_lshlrev_b32 v40, 1, v1')
    a('s_waitcnt lgkmcnt(0)')
    srd(a, 16, 10, 1280000)
    a('buffer_load_dwordx4 v[4:7], v2, s[16:19], 0 offen')
    srd(a, 20, 8, 1280000)
    a('buffer_load_dwordx4 v[8:11], v2, s[20:23], 0 offen')
    srd(a, 24, 4, 1920000)
    a('buffer_load_dwordx4 v[12:15], v3, s[24:27], 0 offen')
    a('buffer_load_dwordx2 v[16:17], v3, s[24:27], 0 offen offset:16')
    srd(a, 28, 6, 640000)
    a('buffer_load_dwordx2 v[18:19], v40, s[28:31], 0 offen')
    prefetch()
    srd(a, 32, 12, 320000 * 12, WS_REC)
    srd(a, 36, 12, NCH * 1024, WS_TBL)
    a('s_cmp_lg_u32 s3, 0\ns_cbranch_scc1 K1_NOZ')
    a('v_mov_b32 v44, 0\nv_mov_b32 v45, 0\nv_mov_b32 v46, 0\nv_mov_b32 v47, 0')
    a('v_lshlrev_b32 v41, 4, v0')
    a(f'ds_write_b128 v41, v[44:47] offset:{HIST}')
    a('s_waitcnt lgkmcnt(0)')
    a('K1_NOZ:')
    a('s_barrier')
    a('s_mov_b32 s40, -40' if nbin == 250 else 's_mov_b32 s40, 625')
    a('v_mov_b32 v42, 1')
    a(f's_mov_b32 s41, {STG}')
    a(f's_waitcnt vmcnt({4+pf})')
    st.full('dst_arr')
    if nbin == 250:
        for i in range(4):
            a(f'v_mul_u32_u24 v{48+i}, 52429, v{4+i}')
        for i in range(4):
            a(f'v_lshrrev_b32 v{48+i}, 21, v{48+i}')
        for i in range(4):
            a(f'v_mad_i32_i24 v{52+i}, v{48+i}, s40, v{4+i}')
            a(f'v_lshlrev_b32 v{48+i}, 2, v{48+i}')
        for i in range(4):
            a(f'ds_add_rtn_u32 v{56+i}, v{48+i}, v42 offset:{HIST}')
    else:
        for i in range(4):
            a(f'v_mul_u32_u24 v{48+i}, 214749, v{4+i}')
        for i in range(4):
            a(f'v_lshrrev_b32 v{52+i}, 23, v{48+i}')
        for i in range(4):
            a(f'v_lshlrev_b32 v{48+i}, 2, v{52+i}')
            a(f'ds_add_rtn_u32 v{56+i}, v{48+i}, v42 offset:{HIST}')
        for i in range(4):
            a(f'v_mad_u32_u24 v{52+i}, v{52+i}, s40, 15')
        for i in range(4):
            a(f'v_lshrrev_b32 v{52+i}, 4, v{52+i}')
        for i in range(4):
            a(f'v_sub_u32 v{52+i}, v{4+i}, v{52+i}')
    if old:
        for i in range(4):
            a(f'v_mul_u32_u24 v{60+i}, 52, v{52+i}')
        for i in range(4):
            a(f'v_lshrrev_b32 v{60+i}, 8, v{60+i}')
        for i in range(4):
            a(f'v_mad_u32_u24 v{52+i}, v{60+i}, 3, v{52+i}')
    D0, D1, D2 = (0, 1, 2) if old else (2, 0, 1)
    a(f's_waitcnt vmcnt({3+pf})')
    for i in range(4):
        a(f'v_lshlrev_b32 v{60+i}, 10, v{8+i}')
        a(f'v_lshl_or_b32 v{20+D0+4*i}, v{52+i}, {24 if old else 3}, v{60+i}')
    a(f's_waitcnt vmcnt({pf})')
    a('v_lshlrev_b32 v60, 16, v18\nv_and_b32 v61, 0xffff0000, v18')
    a('v_lshlrev_b32 v62, 16, v19\nv_and_b32 v63, 0xffff0000, v19')
    ysrc = [[(12, 0), (12, 1), (13, 0)], [(13, 1), (14, 0), (14, 1)],
            [(15, 0), (15, 1), (16, 0)], [(16, 1), (17, 0), (17, 1)]]
    for i in range(4):
        for k in range(3):
            r, hi = ysrc[i][k]
            if hi:
                a(f'v_and_b32 v{64+k}, 0xffff0000, v{r}')
            else:
                a(f'v_lshlrev_b32 v{64+k}, 16, v{r}')
        for k in range(3):
            a(f'v_mul_f32 v{64+k}, v{60+i}, v{64+k}')
        a(f'v_cvt_pk_bf16_f32 v{20+D1+4*i}, v{60+i}, v64')
        a(f'v_cvt_pk_bf16_f32 v{20+D2+4*i}, v65, v66')
    a('s_waitcnt lgkmcnt(0)')
    st.full('rec_ready')
    a('s_barrier')
    a('v_and_b32 v41, 63, v0')
    a('v_lshlrev_b32 v43, 4, v41')
    a(f'ds_read_b128 v[4:7], v43 offset:{HIST}')
    a('s_waitcnt lgkmcnt(0)')
    a('v_add_u32 v8, v4, v5')
    a('v_add_u32 v9, v8, v6')
    a('v_add_u32 v10, v9, v7')
    a('v_mov_b32 v11, v10')
    for sh in (1, 2, 4, 8):
        a('s_nop 1')
        a(f'v_add_u32_dpp v11, v11, v11 row_shr:{sh} row_mask:0xf bank_mask:0xf')
    a('s_nop 1')
    a('v_add_u32_dpp v11, v11, v11 row_bcast:15 row_mask:0xa bank_mask:0xf')
    a('s_nop 1')
    a('v_add_u32_dpp v11, v11, v11 row_bcast:31 row_mask:0xc bank_mask:0xf')
    a('v_sub_u32 v12, v11, v10')
    a('v_add_u32 v13, v12, v4')
    a('v_add_u32 v14, v12, v8')
    a('v_add_u32 v15, v12, v9')
    a(f'ds_write_b128 v43, v[12:15] offset:{OFF}')
    for i in range(4):
        a(f'ds_read_b32 v{60+i}, v{48+i} offset:{OFF}')
    a('s_cmp_lg_u32 s3, 0\ns_cbranch_scc1 K1_NOT')
    a('s_lshl_b32 s15, s2, 10')
    for i in range(4):
        a(f'v_lshl_or_b32 v{8+i}, v{4+i}, 16, v{12+i}')
    a(f'buffer_store_dwordx4 v[8:11], v43, s[36:39], s15 offen {sc}')
    a('K1_NOT:')
    a('s_waitcnt lgkmcnt(0)')
    for i in range(4):
        a(f'v_add_u32 v{60+i}, v{60+i}, v{56+i}')
        a(f'v_mad_u32_u24 v{60+i}, v{60+i}, 12, s41')
    for i in range(4):
        a(f'ds_write2_b32 v{60+i}, v{20+4*i}, v{21+4*i} offset0:0 offset1:1')
        a(f'ds_write_b32 v{60+i}, v{22+4*i} offset:8')
    a('v_lshlrev_b32 v2, 4, v0')
    a(f's_mul_i32 s15, s2, {CHUNK*12}')
    a('s_add_u32 s42, s15, 5120\ns_add_u32 s43, s15, 10240')
    a('s_waitcnt lgkmcnt(0)')
    a('s_barrier')
    for k in range(3):
        a(f'ds_read_b128 v[{4+4*k}:{7+4*k}], v2 offset:{STG + 5120*k}')
    for k, sr in enumerate(('s15', 's42', 's43')):
        a(f's_waitcnt lgkmcnt({2-k})')
        a(f'buffer_store_dwordx4 v[{4+4*k}:{7+4*k}], v2, s[32:35], {sr} offen {sc}')
    st.full('st_issued')
    if stamp:
        a('s_waitcnt vmcnt(0)')
        st.full('end')
        st.dump(12, WS_ST1, 3, 8, 44)
    a('s_endpgm')
    a('K1_FOLD:')
    a('v_readfirstlane_b32 s3, v1')
    a('s_load_dwordx2 s[18:19], s[0:1], 40')
    a('s_load_dwordx4 s[20:23], s[0:1], 48')
    a('v_and_b32 v1, 63, v0')
    a(f's_sub_u32 s14, s2, {NCH}\ns_mul_i32 s14, s14, 5\ns_add_u32 s14, s14, s3')
    a('s_mul_i32 s24, s14, 3277\ns_lshr_b32 s24, s24, 16')
    a('s_mul_i32 s25, s24, 20\ns_sub_u32 s25, s14, s25')
    a('s_lshr_b32 s26, s25, 2\ns_and_b32 s27, s25, 3')
    a('s_waitcnt lgkmcnt(0)')
    srd(a, 48, 18, 1280)
    a('s_cmp_eq_u32 s26, 0\ns_cselect_b32 s28, 1, 0')
    a('s_cmp_eq_u32 s26, 3\ns_cselect_b32 s28, 1, s28')
    a('s_cmp_eq_u32 s28, 1')
    a('s_cselect_b32 s52, s20, s22\ns_cselect_b32 s53, s21, s23')
    a('s_mov_b32 s54, 98304')
    a('s_cselect_b32 s54, 65536, s54')
    a('s_mov_b32 s55, 0x20000')
    a('s_lshr_b32 s29, s26, 1')
    a('s_mov_b32 s30, 0')
    a('s_cmp_eq_u32 s26, 1\ns_cselect_b32 s30, 2, s30')
    a('s_cmp_eq_u32 s26, 2\ns_cselect_b32 s30, 3, s30')
    a('s_cmp_eq_u32 s26, 3\ns_cselect_b32 s30, 1, s30')
    a('s_cmp_eq_u32 s26, 4\ns_cselect_b32 s30, 4, s30')
    srd(a, 56, 12, 160 * 1024, WS_WF)
    a('v_lshrrev_b32 v2, 4, v1\nv_and_b32 v3, 15, v1')
    a('v_lshlrev_b32 v4, 2, v2')
    a('s_lshl_b32 s31, s27, 5')
    a('v_add_u32 v4, s31, v4')
    a('s_lshl_b32 s31, s30, 8')
    a('v_lshl_add_u32 v5, v4, 1, s31')
    a('s_lshl_b32 s31, s29, 15')
    a('s_lshl_b32 s33, s24, 5\ns_add_u32 s31, s31, s33')
    a('v_lshlrev_b32 v6, 8, v4')
    a('v_lshl_add_u32 v6, v3, 1, v6')
    a('v_add_u32 v6, s31, v6')
    a('v_add_u32 v20, 4096, v6')
    a('buffer_load_dwordx2 v[8:9], v5, s[48:51], 0 offen')
    a('buffer_load_dwordx2 v[10:11], v5, s[48:51], 0 offen offset:32')
    for j in range(8):
        a(f'buffer_load_ushort v{12+j}, v{6 if j < 4 else 20}, s[52:55], 0 offen offset:{(j&3)*256}')
    if pf:
        srd(a, 60, 44, XBYTES)
        for k in range(pf):
            a(f'buffer_load_dword v{69+k}, v68, s[60:63], 0 offen offset:{128*k}')
    a(f's_waitcnt vmcnt({pf})')
    for j in range(8):
        r = 8 + (j >> 1)
        if j & 1:
            a(f'v_and_b32 v{40+j}, 0xffff0000, v{r}')
        else:
            a(f'v_lshlrev_b32 v{40+j}, 16, v{r}')
    for j in range(8):
        a(f'v_lshlrev_b32 v{12+j}, 16, v{12+j}')
    for j in range(8):
        a(f'v_mul_f32 v{40+j}, v{40+j}, v{12+j}')
    for j in range(4):
        a(f'v_cvt_pk_bf16_f32 v{48+j}, v{40+2*j}, v{41+2*j}')
    a('s_lshl_b32 s35, s14, 10')
    a('v_lshlrev_b32 v7, 4, v1')
    a(f'buffer_store_dwordx4 v[48:51], v7, s[56:59], s35 offen {sc}')
    if stamp:
        st.names = ['start']
        st.full('hend')
        a('s_waitcnt vmcnt(0)')
    a('K1_END:')
    a('s_endpgm')
```

```python
import sys
from gen import Asm, srd, Stamp, descriptor, header, NAME, K2, K1
import gen3_k1
from gen3_k1 import NBIN, NCH, CHUNK, WS_REC, WS_TBL, WS_WF, OOB, XBYTES, WS_ST1, WS_ST2

WS_DBG = 0x1000000


class Cfg:
    def __init__(self, **kw):
        self.R = 4
        self.NMAX = 12
        self.NMIN = 9
        self.B = 2
        self.dma_first = True
        self.g2first = True
        self.stamp = False
        self.abl = ''
        self.dbg = None
        self.k1sc = 'sc0 sc1'
        self.osc = 'sc0 sc1'
        self.zero7 = True
        self.force_slow = False
        self.wpf = False
        self.stepst = -1
        self.l2pf = 0
        self.l2pos = 'rec'
        self.l2plan = [('rec', 3, 0, 41)]
        self.order = (3, 2, 4, 5, 6, 7, 0, 1)
        self.lgr = False
        self.barlate = 0
        self.prio = 0
        self.shift = 0
        self.fw64 = False
        self.soff0 = 0
        self.k1pf = 0
        self.loopdbg = False
        self.force_vg = False
        self.lastm = 0
        self.wgskip = 0
        self.vmx = 0
        self.gpol = ''
        self.nbin = 250
        self.xwarm = 0
        for k, v in kw.items():
            assert hasattr(self, k), k
            setattr(self, k, v)
        self.AW = 18432
        self.STG = 6144
        self.FO = 12288
        self.TBL = 0
        self.CNT = self.TBL + 8192
        self.FLAG = self.CNT + 512
        self.OFF = self.CNT + 1024
        self.AB = 10240
        self.LDS = self.AB + 8 * self.AW
        assert self.LDS <= 163840


V_LANE, V_TRL, V_FW, V_FRA, V_FRB, V_CHUNK, V_L16 = 1, 2, 6, 7, 8, 9, 10
SET = (16, 24)
G2B = 32
AGG = 48
OUT = 80
WREG = 128
COEF = 176
PA = 224
S_W = 3
SRD_X, SRD_X1, SRD_WS, SRD_OUT = 4, 8, 12, 16
S_N, S_SOFF, S_RO, S_RB, S_C0, S_CN, S_J0, S_MODE, S_MORE, S_TG = 20, 21, 22, 23, 24, 25, 26, 27, 28, 29
S_FWM = 42
S_WB = 44
S_NODE = 72
S_FT = 77
S_MASK = 78
S_PFR = 79
S_CNTB = 80
S_VAL = 81
S_LASTM = 88
NREC = 10


def rec(i): return 16 + 4 * i
def la(i): return 56 + i
def offp(i): return COEF + 2 * i
V_MT = 66


G0LAST = False
def wslot(mat, Tp):
    if G0LAST:
        return {(4, 0): 0, (4, 1): 1, (2, 0): 2, (2, 1): 3, (3, 0): 4, (3, 1): 5,
                (4, 2): 6, (4, 3): 7, (2, 2): 8, (2, 3): 9, (3, 2): 10, (3, 3): 11,
                (0, 0): 0, (0, 1): 1, (1, 0): 2, (1, 1): 3, (0, 2): 6, (0, 3): 7, (1, 2): 8, (1, 3): 9}[(mat, Tp)]
    return {(0, 0): 0, (0, 1): 1, (1, 0): 2, (1, 1): 3, (0, 2): 4, (0, 3): 5, (1, 2): 6, (1, 3): 7,
            (2, 0): 8, (2, 1): 9, (3, 0): 10, (3, 1): 11, (4, 0): 0, (4, 1): 1,
            (2, 2): 2, (2, 3): 3, (3, 2): 4, (3, 3): 5, (4, 2): 6, (4, 3): 7}[(mat, Tp)]


def g2_plan(pr, c):
    g, half = c.order[pr] >> 1, c.order[pr] & 1
    sign = {(1, 2): 1, (2, 0): 1, (0, 1): 1, (2, 1): -1, (1, 0): -1, (0, 2): -1}
    def group(pp, mat, o):
        out = []
        for T in range(2):
            for nt in range(3):
                Tp = 2 * half + T
                base = V_FRA if pp < 2 else V_FRB
                off = (pp & 1) * (c.AW + 32) + T * 3072 + nt * 256
                out.append(('mm', base, off, WREG + 4 * wslot(mat, Tp), OUT + (o * 3 + nt) * 4))
        return out
    if g == 0:
        lst = group(0, 0, 0)
        for pp in range(1, 4):
            lst += group(pp, 1, pp)
        return lst
    k = g - 1
    js = [j for j in range(3) if j != k]
    state = 1 if k % 2 == 0 else -1
    first = [j for j in js if sign[(j, k)] == state][0]
    second = [j for j in js if j != first][0]
    lst = group(1 + first, 4, 1 + (3 - first - k))
    lst += group(0, 2, 1 + k)
    lst += group(1 + k, 3, 0)
    lst += [('flip', half)]
    lst += group(1 + second, 4, 1 + (3 - second - k))
    return lst


def wload(a, slot, f, tmp):
    a(f'buffer_load_dwordx4 v[{WREG+4*slot}:{WREG+4*slot+3}], v{V_L16}, s[{SRD_WS}:{SRD_WS+3}], s{tmp} offen offset:{1024*(f&3)}')


def gen_k2(a, c):
    global G0LAST
    R, B, NMAX, NMIN, AW = c.R, c.B, c.NMAX, c.NMIN, c.AW
    G0LAST = tuple(c.order) != (0, 1, 2, 3, 4, 5, 6, 7)
    assert G0LAST
    if G0LAST:
        assert sorted(c.order[:2]) == [2, 3] and tuple(c.order[2:]) == (4, 5, 6, 7, 0, 1) and not c.wpf and not c.soff0
    assert R == 4
    stp = Stamp(a, c.stamp, 50, 52)
    plan_pf = c.l2plan if c.l2plan is not None else [(c.l2pos, k, 0, 41) for k in range(c.l2pf)]
    pfregs = [11, 15, 12, 13]
    NB = c.nbin
    PFW = 41 if NB == 250 else 40
    def l2at(pos):
        todo = [t for t in plan_pf if t[0] == pos]
        if not todo: return 0
        a(f's_mul_i32 s37, s{S_W}, {PFW}\ns_add_u32 s37, s37, s{S_PFR}')
        a(f'v_add_u32 v14, s37, v{V_LANE}\nv_lshlrev_b32 v14, 10, v14')
        a(f's_mov_b32 s{SRD_X+2}, {XBYTES}')
        for (_, k, lo, hi) in todo:
            hi = min(hi, PFW)
            a(f's_bfm_b64 exec, {hi-lo}, {lo}')
            a(f's_mov_b32 s37, {128*k}')
            a(f'buffer_load_dword v{pfregs.pop(0)}, v14, s[{SRD_X}:{SRD_X+3}], s37 offen')
        a('s_mov_b64 exec, -1')
        return len(todo)
    l = V_LANE
    a(f'.globl {K2}\n.p2align 8\n.type {K2},@function\n{K2}:')
    a(f's_cmp_ge_u32 s2, {NB if not c.wgskip else 8*c.wgskip}\ns_cbranch_scc1 K2_END')
    a('s_load_dwordx2 s[30:31], s[0:1], 0')
    a('s_load_dwordx2 s[32:33], s[0:1], 72')
    a('s_load_dwordx2 s[34:35], s[0:1], 88')
    if NB == 250:
        a('s_and_b32 s36, s2, 7\ns_lshr_b32 s37, s2, 3\ns_mul_i32 s38, s36, 31\ns_min_u32 s36, s36, 2')
        a(f's_mul_i32 s{S_PFR}, s37, 328')
        a('s_add_u32 s38, s38, s36\ns_add_u32 s2, s38, s37')
    else:
        a('s_and_b32 s36, s2, 7\ns_lshr_b32 s37, s2, 3\ns_lshl_b32 s38, s36, 5')
        a(f's_mul_i32 s{S_PFR}, s37, 320')
        a('s_add_u32 s2, s38, s37')
    a(f'v_and_b32 v{l}, 63, v0')
    a('v_lshrrev_b32 v60, 6, v0')
    a(f's_lshl_b32 s{S_TG}, s2, 2\ns_add_u32 s{S_TG}, s{S_TG}, {WS_TBL}')
    a(f'v_readfirstlane_b32 s{S_W}, v60')
    a(f's_mov_b32 s{S_C0}, 0\ns_mov_b32 s{S_CN}, {NCH}\ns_mov_b32 s{S_J0}, 0\ns_mov_b32 s{S_MODE}, 0')
    a('v_lshrrev_b32 v61, 1, v0')
    a('v_lshlrev_b32 v62, 10, v61')
    stp.issue()
    if c.stamp: a('s_memtime s[86:87]')
    a('s_waitcnt lgkmcnt(0)')
    stp.save('start')
    srd(a, SRD_WS, 34, WS_WF + 160 * 1024)
    a(f'buffer_load_dword v63, v62, s[{SRD_WS}:{SRD_WS+3}], s{S_TG} offen')
    srd(a, SRD_X, 30, XBYTES)
    nstart = l2at('start')
    a(f's_sub_u32 s{SRD_X1}, s30, 1024\ns_subb_u32 s{SRD_X1+1}, s31, 0')
    a(f's_mov_b32 s{SRD_X1+2}, {XBYTES+1024}\ns_mov_b32 s{SRD_X1+3}, 0x20000')
    srd(a, SRD_OUT, 32, XBYTES)
    a(f's_mul_i32 s{S_WB}, s{S_W}, 20480\ns_add_u32 s{S_WB}, s{S_WB}, {WS_WF}')
    a(f's_mul_i32 s{S_RB}, s{S_W}, {AW}\ns_add_u32 s{S_RB}, s{S_RB}, {c.AB}')
    a(f's_mov_b32 s{S_FT}, {4*AW}')
    a(f's_mov_b32 s{S_MASK}, 0xfffffc00')
    a(f's_mov_b32 s{S_FWM}, 0x000f000f\ns_mov_b32 s{S_FWM+1}, 0x000f000f')
    a(f'v_lshlrev_b32 v{V_L16}, 4, v{l}')
    a(f'v_and_b32 v66, 7, v{l}')
    a(f'v_bfe_u32 v67, v{l}, 4, 1')
    a('v_lshlrev_b32 v68, 2, v67\nv_xor_b32 v68, v68, v66')
    a(f'v_lshlrev_b32 v{V_CHUNK}, 4, v68')
    a(f'v_bfe_u32 v68, v{l}, 2, 2')
    a(f'v_and_b32 v69, 3, v{l}')
    a(f'v_lshrrev_b32 v70, 4, v{l}')
    a('v_lshl_add_u32 v71, v70, 3, v68')
    a('v_lshlrev_b32 v71, 7, v71')
    a('v_lshrrev_b32 v72, 1, v69')
    a('v_lshrrev_b32 v73, 1, v68\nv_lshlrev_b32 v73, 2, v73')
    a('v_xor_b32 v72, v72, v73')
    a('v_lshlrev_b32 v73, 1, v67')
    a('v_xor_b32 v72, v72, v73')
    a('v_lshl_add_u32 v71, v72, 4, v71')
    a('v_and_b32 v73, 1, v69')
    a('v_lshl_add_u32 v71, v73, 3, v71')
    a(f'v_add_u32 v{V_TRL}, s{S_RB}, v71')
    for ft in range(1, 4):
        a(f'v_xor_b32 v{V_TRL+ft}, {32*ft}, v{V_TRL}')
    a(f's_mul_i32 s39, s{S_W}, 80\ns_add_u32 s39, s39, {c.AB + c.FO}')
    a(f's_mov_b32 s40, {AW+32}')
    a('v_mul_lo_u32 v72, v69, s40')
    a('v_mul_u32_u24 v73, 768, v70')
    a('v_add3_u32 v72, v72, v73, s39')
    a(f'v_lshl_add_u32 v{V_FW}, v68, 4, v72')
    a(f'v_lshrrev_b32 v72, 4, v{l}\nv_mul_u32_u24 v72, 768, v72')
    a(f'v_and_b32 v73, 15, v{l}')
    a('v_lshl_add_u32 v72, v73, 4, v72')
    a(f'v_add_u32 v{V_FRA}, {c.AB + c.FO}, v72')
    a(f'v_add_u32 v{V_FRB}, {c.AB + c.FO + 2*(AW+32)}, v72')
    for i in range(0, 48, 2):
        a(f'v_mov_b64 v[{OUT+i}:{OUT+i+1}], 0')
    a('K2_ROUND:')
    a('v_mov_b64 v[68:69], 0\nv_mov_b64 v[70:71], 0')
    a(f'v_mov_b32 v72, {OOB}\nv_mov_b32 v73, {OOB}\nv_mov_b32 v74, {OOB}\nv_mov_b32 v75, {OOB}')
    a(f'v_add_u32 v76, s{S_RB}, v{V_L16}')
    for k in range(12):
        a(f'ds_write_b128 v76, v[68:71] offset:{c.STG + 1024*k}')
    a(f's_lshl_b32 s38, s{S_W}, 10\ns_add_u32 s38, s38, {c.TBL}')
    a(f'v_add_u32 v77, s38, v{V_L16}')
    a('ds_write_b128 v77, v[72:75]')
    a(f's_cmp_lg_u32 s{S_W}, 0\ns_cbranch_scc1 K2_I1')
    a(f'v_add_u32 v77, {c.CNT}, v{V_L16}')
    a('ds_write_b128 v77, v[68:71]')
    a('K2_I1:')
    a('s_waitcnt vmcnt(0)' if not nstart else f's_waitcnt vmcnt({nstart})')
    stp.full('tbl_arr')
    l2at('tbl')
    a('v_lshrrev_b32 v61, 1, v0')
    a('v_and_b32 v62, 1, v0')
    a(f'v_add_u32 v64, s{S_C0}, v61')
    a(f'v_cmp_gt_u32 vcc, s{S_CN}, v61')
    a(f's_mov_b32 s45, {NCH}')
    a('v_cmp_gt_u32 s[40:41], s45, v64')
    a('s_nop 1')
    a('s_and_b64 vcc, vcc, s[40:41]')
    a('v_cndmask_b32 v63, 0, v63, vcc')
    a('v_lshrrev_b32 v65, 16, v63')
    a('v_and_b32 v67, 0xffff, v63')
    a(f'v_subrev_u32 v65, s{S_J0}, v65')
    a('v_max_i32 v65, 0, v65')
    a(f'v_min_u32 v{V_MT}, 20, v65')
    a(f'v_sub_u32 v{V_MT}, v{V_MT}, v62')
    a(f'v_add_u32 v{V_MT}, 1, v{V_MT}')
    a(f'v_lshrrev_b32 v{V_MT}, 1, v{V_MT}')
    a(f'v_mul_u32_u24 v64, {CHUNK}, v64')
    a(f'v_add3_u32 v64, v64, v67, s{S_J0}')
    a('v_add_u32 v64, v64, v62')
    a('v_mul_u32_u24 v64, 12, v64')
    for i in range(NREC):
        a(f'v_cmp_lt_u32 vcc, {i}, v{V_MT}')
        a('s_and_b64 exec, exec, vcc')
        a('s_cbranch_execz K2_LD_DONE')
        a(f'buffer_load_dwordx3 v[{rec(i)}:{rec(i)+2}], v64, s[{SRD_WS}:{SRD_WS+3}], 0 offen offset:{24*i}')
    a('K2_LD_DONE:')
    a('s_mov_b64 exec, -1')
    if G0LAST:
        a(f's_add_u32 s37, s{S_WB}, 16384\ns_add_u32 s38, s{S_WB}, 8192\ns_add_u32 s39, s{S_WB}, 12288')
        for slot, f in enumerate((16, 17, 8, 9, 12, 13, 18, 19, 10, 11, 14, 15)):
            wload(a, slot, f, (None, None, 38, 39, 37)[f >> 2])
    else:
        a(f's_add_u32 s37, s{S_WB}, 4096\ns_add_u32 s38, s{S_WB}, 8192\ns_add_u32 s39, s{S_WB}, 12288')
        for slot, f in enumerate((0, 1, 4, 5, 2, 3, 6, 7, 8, 9, 12, 13)):
            wload(a, slot, f, (S_WB, 37, 38, 39)[f >> 2])
    nx = l2at('recq')
    if c.wpf:
        a(f'v_lshrrev_b32 v11, 4, v{l}\nv_min_u32 v11, 1, v11\nv_lshlrev_b32 v11, 11, v11')
        a(f'v_lshl_add_u32 v11, v{l}, 7, v11')
        a(f's_add_u32 s37, s{S_WB}, 10240')
        a(f'buffer_load_dword v11, v11, s[{SRD_WS}:{SRD_WS+3}], s37 offen')
        nx += 1
    if c.xwarm:
        a(f's_mul_i32 s37, s2, 320\ns_mul_i32 s38, s{S_W}, 40\ns_add_u32 s37, s37, s38\ns_lshl_b32 s37, s37, 7')
        a(f'v_lshlrev_b32 v14, 7, v{l}')
        a(f's_mov_b32 s{SRD_X+2}, {XBYTES}')
        a('s_bfm_b64 exec, 40, 0')
        a(f'buffer_load_dword v14, v14, s[{SRD_X}:{SRD_X+3}], s37 offen')
        a('s_mov_b64 exec, -1')
        nx += 1
    a('v_mov_b32 v68, 1')
    a('s_waitcnt lgkmcnt(0)')
    a('s_barrier')
    a('v_cmp_lt_u32 vcc, 20, v65')
    a('s_and_saveexec_b64 s[40:41], vcc')
    a('s_cbranch_execz K2_NOMORE')
    a(f'v_mov_b32 v69, {c.FLAG}')
    a('ds_write_b32 v69, v68')
    a('K2_NOMORE:')
    a('s_mov_b64 exec, s[40:41]')
    a(f's_waitcnt vmcnt({12+nx})')
    stp.full('rec_arr')
    l2at('rec')
    for i in range(NREC):
        a(f'v_cmp_lt_u32 vcc, {i}, v{V_MT}')
        a('s_and_b64 exec, exec, vcc')
        a('s_cbranch_execz K2_RK_DONE')
        a(f'v_and_b32 v{la(i)}, 0x3f8, v{rec(i)+2}')
        a(f'ds_add_rtn_u32 v{rec(i)+3}, v{la(i)}, v68 offset:{c.CNT}')
    a('K2_RK_DONE:')
    a('s_mov_b64 exec, -1')
    a(f'v_lshrrev_b32 v70, 3, v{l}')
    a(f'v_and_b32 v71, 7, v{l}')
    a(f's_mov_b32 s45, {AW}')
    a('v_mul_lo_u32 v72, v70, s45')
    a('s_mov_b32 s45, 0x76532104')
    a('v_lshlrev_b32 v71, 2, v71')
    a('v_bfe_u32 v71, s45, v71, 3')
    a('v_lshl_add_u32 v72, v71, 3, v72')
    a(f'v_add_u32 v72, {c.AB + c.STG}, v72')
    a('v_lshlrev_b32 v73, 10, v70')
    a(f'v_add_u32 v73, {c.TBL}, v73')
    a(f'v_lshlrev_b32 v67, 3, v{l}')
    a(f'v_mov_b32 v69, {c.FLAG}')
    a('s_waitcnt lgkmcnt(0)')
    a('s_barrier')
    stp.full('rank_bar')
    l2at('rank')
    a(f'ds_read_b32 v68, v67 offset:{c.CNT}')
    a('ds_read_b32 v70, v69')
    a(f'v_cmp_gt_u32 vcc, 40, v{l}')
    a(f's_cmp_eq_u32 s{S_MODE}, 0')
    a('s_waitcnt lgkmcnt(0)')
    a(f'v_readfirstlane_b32 s{S_MORE}, v70')
    a('s_cbranch_scc0 K2_IDENT')
    if c.force_slow:
        a('s_branch K2_FALLBACK')
    a(f's_cmp_lg_u32 s{S_MORE}, 0\ns_cbranch_scc1 K2_FALLBACK')
    T0 = 196
    a('v_med3_u32 v71, v68, 17, 47')
    a('v_subrev_u32 v71, 16, v71')
    a('v_cndmask_b32 v71, 0, v71, vcc')
    for b in range(5):
        a(f'v_bfe_i32 v{T0+b}, v71, {b}, 1')
    MS = [36, 38, 40, 46, 48]
    for b in range(5):
        a(f'v_cmp_ne_u32_e64 s[{MS[b]}:{MS[b]+1}], 0, v{T0+b}')
    a('s_nop 1')
    GL, GH, EL, EH, UL, UH = 201, 202, 203, 204, 205, 206
    for b in (4, 3, 2, 1, 0):
        m, t = MS[b], T0 + b
        if b == 4:
            a(f'v_bfi_b32 v{GL}, v{t}, 0, s{m}')
            a(f'v_bfi_b32 v{GH}, v{t}, 0, s{m+1}')
            a(f'v_xnor_b32 v{EL}, s{m}, v{t}')
            a(f'v_xnor_b32 v{EH}, s{m+1}, v{t}')
        else:
            a(f'v_bfi_b32 v{UL}, v{t}, 0, s{m}')
            a(f'v_bfi_b32 v{UH}, v{t}, 0, s{m+1}')
            a(f'v_and_or_b32 v{GL}, v{EL}, v{UL}, v{GL}')
            a(f'v_and_or_b32 v{GH}, v{EH}, v{UH}, v{GH}')
            a(f'v_bitop3_b32 v{EL}, v{EL}, s{m}, v{t} bitop3:0x90')
            a(f'v_bitop3_b32 v{EH}, v{EH}, s{m+1}, v{t} bitop3:0x90')
    a(f'v_bcnt_u32_b32 v71, v{GL}, 0')
    a(f'v_bcnt_u32_b32 v71, v{GH}, v71')
    a(f'v_mbcnt_lo_u32_b32 v71, v{EL}, v71')
    a(f'v_mbcnt_hi_u32_b32 v71, v{EH}, v71')
    a('v_bfe_i32 v74, v71, 3, 1')
    a('v_xor_b32 v74, v71, v74')
    a('v_and_b32 v74, 7, v74')
    a('v_lshrrev_b32 v71, 1, v71\nv_and_b32 v71, 0x1c, v71')
    a('s_mov_b32 s45, 0x76501234')
    a('v_bfe_u32 v71, s45, v71, 3')
    a('v_lshl_add_u32 v71, v74, 3, v71')
    a('s_branch K2_PERM')
    a('K2_IDENT:')
    a(f'v_mul_u32_u24 v71, 52, v{l}\nv_lshrrev_b32 v71, 8, v71')
    a(f'v_mad_u32_u24 v71, v71, 3, v{l}')
    a(f'v_subrev_u32 v74, 40, v{l}')
    a('v_mul_u32_u24 v75, 86, v74\nv_lshrrev_b32 v75, 8, v75')
    a('v_mad_u32_u24 v75, v75, 5, v74')
    a('v_add_u32 v75, 5, v75')
    a('v_cndmask_b32 v71, v75, v71, vcc')
    a('K2_PERM:')
    a('v_lshlrev_b32 v71, 2, v71')
    a(f'v_lshl_or_b32 v74, v{l}, 16, v68')
    a('ds_permute_b32 v75, v71, v74')
    a('s_waitcnt lgkmcnt(0)')
    a('v_and_b32 v76, 0xffff, v75')
    a('v_mov_b32 v77, v76')
    a('s_nop 1')
    a('v_add_u32_dpp v77, v77, v77 row_shr:1 row_mask:0xf bank_mask:0xf')
    a('s_nop 1')
    a('v_add_u32_dpp v77, v77, v77 row_shr:2 row_mask:0xf bank_mask:0xf')
    a('s_nop 1')
    a('v_add_u32_dpp v77, v77, v77 row_shr:4 row_mask:0xf bank_mask:0xa')
    a(f's_mov_b32 s45, {16*NMAX}')
    a('v_cmp_lt_u32 vcc, s45, v77')
    a('v_sub_u32 v78, v77, v76')
    a(f's_lshl_b32 s46, s{S_W}, 3')
    a(f'v_readlane_b32 s{S_CNTB}, v76, s46')
    a(f's_cmp_eq_u32 s{S_MODE}, 0\ns_cbranch_scc0 K2_GO')
    a('s_cmp_lg_u64 vcc, 0\ns_cbranch_scc1 K2_FALLBACK')
    a('K2_GO:')
    a('v_lshl_add_u32 v72, v78, 6, v72')
    a('v_lshl_add_u32 v73, v78, 2, v73')
    a('v_lshrrev_b32 v74, 16, v75')
    a('v_lshlrev_b32 v76, 3, v74')
    a(f'ds_write_b64 v76, v[72:73] offset:{c.OFF}')
    a('s_add_u32 s47, s46, 7')
    a(f'v_readlane_b32 s{S_N}, v77, s47')
    for q in range(5):
        if q: a('s_add_u32 s46, s46, 1')
        a(f'v_readlane_b32 s{S_NODE+q}, v74, s46')
    a('s_waitcnt lgkmcnt(0)')
    for i in range(NREC):
        a(f'v_cmp_lt_u32 vcc, {i}, v{V_MT}')
        a('s_and_b64 exec, exec, vcc')
        a('s_cbranch_execz K2_OF_DONE')
        a(f'ds_read_b64 v[{offp(i)}:{offp(i)+1}], v{la(i)} offset:{c.OFF}')
    a('K2_OF_DONE:')
    a('s_mov_b64 exec, -1')
    if NB == 250:
        a('s_mul_i32 s45, s2, 40')
    else:
        a('s_mul_i32 s46, s2, 625\ns_add_u32 s45, s46, 15\ns_lshr_b32 s45, s45, 4')
        a('s_add_u32 s46, s46, 640\ns_lshr_b32 s46, s46, 4\ns_sub_u32 s46, s46, s45')
        a(f's_mov_b32 s{S_VAL}, 0')
        for q in range(5):
            a(f's_cmp_lt_u32 s{S_NODE+q}, s46\ns_cselect_b32 s47, {1 << q}, 0\ns_or_b32 s{S_VAL}, s{S_VAL}, s47')
    for q in range(5):
        a(f's_add_u32 s{S_NODE+q}, s{S_NODE+q}, s45\ns_lshl_b32 s{S_NODE+q}, s{S_NODE+q}, 10')
    a('s_waitcnt lgkmcnt(0)')
    for i in range(NREC):
        a(f'v_cmp_lt_u32 vcc, {i}, v{V_MT}')
        a('s_and_b64 exec, exec, vcc')
        a('s_cbranch_execz K2_SC_DONE')
        a(f'v_lshl_add_u32 v{offp(i)}, v{rec(i)+3}, 6, v{offp(i)}')
        a(f'v_lshl_add_u32 v{offp(i)+1}, v{rec(i)+3}, 2, v{offp(i)+1}')
        a(f'ds_write_b64 v{offp(i)}, v[{rec(i)}:{rec(i)+1}]')
        a(f'ds_write_b32 v{offp(i)+1}, v{rec(i)+2}')
    a('K2_SC_DONE:')
    a('s_mov_b64 exec, -1')
    a(f's_lshl_b32 s38, s{S_W}, 10\ns_add_u32 s38, s38, {c.TBL}')
    a(f'v_lshrrev_b32 v67, 3, v{l}')
    a('v_lshl_add_u32 v67, v67, 2, s38')
    a(f'v_bfe_u32 v68, v{l}, 2, 2')
    a(f'v_lshrrev_b32 v70, 4, v{l}')
    a('v_lshl_add_u32 v68, v70, 3, v68')
    a('v_lshlrev_b32 v68, 6, v68')
    a(f'v_and_b32 v69, 3, v{l}')
    a('v_lshl_add_u32 v68, v69, 3, v68')
    a(f's_add_u32 s38, s{S_RB}, {c.STG}')
    a('v_add_u32 v68, s38, v68')
    a(f'v_xor_b32 v66, 32, v{V_CHUNK}')
    a(f's_mov_b32 s{S_SOFF}, {128*c.order[0]}')
    a(f's_mov_b32 s{SRD_X+2}, {XBYTES}\ns_mov_b32 s{SRD_X1+2}, {XBYTES+1024}')
    a(f's_mov_b32 m0, s{S_RB}')
    a('s_waitcnt lgkmcnt(0)')
    a('s_barrier')
    stp.full('scat_bar')
    l2at('scat')
    if c.dbg == 'pro':
        dump_lds(a, c)
        return
    PI = 16
    for t in range(4):
        a(f'ds_read2_b32 v[{PI+2*t}:{PI+2*t+1}], v67 offset0:{16*t} offset1:{16*t+8}')
    for cc in range(8):
        t = cc + 4
        a(f'ds_read2_b32 v[{PA+2*cc}:{PA+2*cc+1}], v67 offset0:{16*t} offset1:{16*t+8}')
    a('s_waitcnt lgkmcnt(8)')
    for t in range(4):
        a(f'v_and_or_b32 v{PI+2*t}, v{PI+2*t}, s{S_MASK}, v{V_CHUNK}')
        a(f'v_and_or_b32 v{PI+2*t+1}, v{PI+2*t+1}, s{S_MASK}, v66')
        if t == 3: continue
        if t: a(f's_add_u32 m0, s{S_RB}, {2048*t}')
        if t: a('s_nop 0')
        a(f'buffer_load_dwordx4 v{PI+2*t}, s[{SRD_X}:{SRD_X+3}], s{S_SOFF} offen{c.gpol} lds')
        a(f'buffer_load_dwordx4 v{PI+2*t+1}, s[{SRD_X1}:{SRD_X1+3}], s{S_SOFF} offen offset:1024{c.gpol} lds')
    a(f's_add_u32 m0, s{S_RB}, 6144')
    a('s_waitcnt lgkmcnt(0)')
    CB = COEF + 24
    def coefread(j, tile):
        r = (COEF, CB)[tile] + 4 * j
        a(f'ds_read_b64_tr_b16 v[{r}:{r+1}], v68 offset:{2048*j + 32*tile}')
        a(f'ds_read_b64_tr_b16 v[{r+2}:{r+3}], v68 offset:{2048*j + 32*tile + 256}')
    coefread(0, 1)
    for j in range(6):
        coefread(j, 0)
    for i in range(16):
        a(f'v_and_or_b32 v{PA+i}, v{PA+i}, s{S_MASK}, v{V_CHUNK if i % 2 == 0 else 66}')
    if 'zcoef' in c.abl:
        a('s_waitcnt lgkmcnt(0)')
        for i in range(48): a(f'v_mov_b32 v{COEF+i}, 0')
    if c.prio:
        a(f's_cmp_ge_u32 s{S_W}, 4\ns_cbranch_scc{0 if c.prio == 1 else 1} K2_PRIO\ns_setprio 1\nK2_PRIO:')
    if c.lastm:
        a(f's_sub_u32 s45, s{S_N}, 1\ns_and_b32 s45, s45, 31\ns_cmp_ge_u32 s45, 16')
        a(f's_cselect_b64 s[{S_LASTM}:{S_LASTM+1}], -1, 0')
        a(f's_cmp_le_u32 s{S_N}, 128\ns_cselect_b64 s[{S_LASTM}:{S_LASTM+1}], 0, s[{S_LASTM}:{S_LASTM+1}]')
    if c.force_vg:
        a('s_branch K2_VG')
    a(f's_cmp_gt_u32 s{S_CNTB}, 32\ns_cbranch_scc1 K2_VG')
    a(f's_cmp_gt_u32 s{S_N}, 160\ns_cbranch_scc1 K2_V6')

    def flip(half):
        base = WREG + (0 if half == 0 else 24)
        for i in range(8):
            a(f'v_xor_b32 v{base+i}, 0x80008000, v{base+i}')

    def batches(pr):
        plan = g2_plan(pr, c)
        bt, cur = [], []
        for t in plan:
            if t[0] == 'flip':
                cur.append(t)
                continue
            if sum(1 for x in cur if x[0] == 'mm') == 4:
                bt.append(cur); cur = []
            cur.append(t)
        bt.append(cur)
        assert len(bt) == 6
        return bt

    def fwrite(p):
        if 'nofw' in c.abl: return
        for i in range(16):
            if 'nocvt' in c.abl: continue
            a(f'v_cvt_pk_bf16_f32 v{G2B+i}, v{AGG+2*i}, v{AGG+2*i+1}')
        for T in range(2):
            if 'nowr' in c.abl: continue
            a(f'ds_write_b128 v{V_FW}, v[{G2B+4*T}:{G2B+4*T+3}] offset:{T*3072 + 16}')
        a(f's_mov_b64 exec, s[{S_FWM}:{S_FWM+1}]')
        for T in range(2):
            if 'nowr' in c.abl: continue
            a(f'ds_write_b128 v{V_FW}, v[{G2B+8+4*T}:{G2B+8+4*T+3}] offset:{T*3072}')
        a('s_mov_b64 exec, -1')
        a(f'v_{"add" if p % 2 == 0 else "subrev"}_u32 v{V_FW}, s{S_FT}, v{V_FW}')

    def version(tag, N, ball):
        U = 2 * N
        names0 = list(stp.names)
        def dest(p, h):
            return ((p * N + (h >> 1)) % 3) * 4096 + (h & 1) * 2048
        def target(p, u):
            h = u + 4
            return (p, h) if h < U else (p + 1, h - U)
        def back(u):
            if 'noback' in c.abl: return
            j, t = u >> 1, u & 1
            s = SET[u & 1]
            tiles = (0, 1) if (j == 0 or ball) else (0,)
            for tile in tiles:
                for f in range(2):
                    d = AGG + 16 * tile + 4 * (2 * t + f)
                    src = f'v[{d}:{d+3}]' if j else '0'
                    b = (COEF, CB)[tile] + 4 * j
                    a(f'v_mfma_f32_16x16x32_bf16 v[{d}:{d+3}], v[{s+4*f}:{s+4*f+3}], v[{b}:{b+3}], {src}')
        def unit(p, u):
            j, t = u >> 1, u & 1
            g2 = p > 0 and 'nog2' not in c.abl
            bt = batches(p - 1) if p > 0 else None
            mark = len(a.L)
            wl = p in (6, 7)
            if u == 0: stp.issue()
            if u == 0 and p == 0 and c.stamp: a('s_memtime s[82:83]')
            if t == 0:
                nv = 4
                if p == 7 and u == U - 2: nv = 0
                if wl and u == 2: nv += 4
                if nv: nv += c.vmx
                a(f's_waitcnt vmcnt({nv}) lgkmcnt(0)')
            else:
                a('s_waitcnt lgkmcnt(0)')
            if u == 0: stp.save(f'ph{p}')
            if u == B and 'nobar' not in c.abl:
                a('s_barrier')
            tp, th = target(p, u)
            if tp < 8:
                if u == U - 4:
                    a(f's_mov_b32 s{S_SOFF}, {128*c.order[p+1]}')
                if 'nodma' not in c.abl:
                    lastm = c.lastm and tp == p and th == U - 1 and not ball
                    if lastm: a(f's_mov_b64 exec, s[{S_LASTM}:{S_LASTM+1}]')
                    if 'vdst' in c.abl:
                        r0 = 32 + 8 * ((p * U + u) % 12)
                        a(f'buffer_load_dwordx4 v[{r0}:{r0+3}], v{PA+2*u}, s[{SRD_X}:{SRD_X+3}], s{S_SOFF} offen{c.gpol}')
                        a(f'buffer_load_dwordx4 v[{r0+4}:{r0+7}], v{PA+2*u+1}, s[{SRD_X1}:{SRD_X1+3}], s{S_SOFF} offen offset:1024{c.gpol}')
                    elif 'vhalf' in c.abl:
                        r0 = 32 + 4 * ((p * U + u) % 12)
                        a(f'buffer_load_dwordx4 v{PA+2*u}, s[{SRD_X}:{SRD_X+3}], s{S_SOFF} offen{c.gpol} lds')
                        a(f'buffer_load_dwordx4 v[{r0}:{r0+3}], v{PA+2*u+1}, s[{SRD_X1}:{SRD_X1+3}], s{S_SOFF} offen offset:1024{c.gpol}')
                    else:
                        a(f'buffer_load_dwordx4 v{PA+2*u}, s[{SRD_X}:{SRD_X+3}], s{S_SOFF} offen{c.gpol} lds')
                        a(f'buffer_load_dwordx4 v{PA+2*u+1}, s[{SRD_X1}:{SRD_X1+3}], s{S_SOFF} offen offset:1024{c.gpol} lds')
                    if lastm: a('s_mov_b64 exec, -1')
            if 'notr' not in c.abl:
                st = SET[u & 1]
                slot = (p * N + j) % 3
                for f in range(2):
                    for h in range(2):
                        a(f'ds_read_b64_tr_b16 v[{st+4*f+2*h}:{st+4*f+2*h+1}], v{V_TRL+2*t+f} offset:{slot*4096 + 512*h}')
            def m0next():
                np_, nu = (p, u + 1) if u + 1 < U else (p + 1, 0)
                if np_ > 7: return
                tp2, th2 = target(np_, nu)
                if tp2 > 7: return
                a(f's_add_u32 m0, s{S_RB}, {dest(tp2, th2)}')
            if u == 0:
                if wl:
                    a(f's_add_u32 s37, s{S_WB}, 4096')
                    if p == 6:
                        wload(a, 0, 0, S_WB); wload(a, 1, 1, S_WB); wload(a, 2, 4, 37); wload(a, 3, 5, 37)
                    else:
                        wload(a, 6, 2, S_WB); wload(a, 7, 3, S_WB); wload(a, 8, 6, 37); wload(a, 9, 7, 37)
                m0next()
                if p > 0:
                    n = len(a.L) - mark + 1
                    if n < 10:
                        a(f's_nop {9 - n}')
                    fwrite(p - 1)
                return
            if u == 1 and p >= 2:
                op = 'add' if p % 2 == 0 else 'subrev'
                a(f'v_{op}_u32 v{V_FRA}, s{S_FT}, v{V_FRA}')
                a(f'v_{op}_u32 v{V_FRB}, s{S_FT}, v{V_FRB}')
            if g2 and B + 1 <= u <= B + 6:
                n = 0
                for x in bt[u - B - 1]:
                    if x[0] == 'flip':
                        continue
                    a(f'v_mfma_f32_16x16x32_bf16 v[{x[4]}:{x[4]+3}], v[{x[3]}:{x[3]+3}], v[{G2B+4*n}:{G2B+4*n+3}], v[{x[4]}:{x[4]+3}]')
                    n += 1
            if g2 and B <= u <= B + 5:
                n = 0
                for x in bt[u - B]:
                    if x[0] == 'flip':
                        continue
                    a(f'ds_read_b128 v[{G2B+4*n}:{G2B+4*n+3}], v{x[1]} offset:{x[2]}')
                    n += 1
            back(u - 1)
            if g2 and c.order[p - 1] >= 2 and u == B + 3 and 'noflip' not in c.abl:
                flip(c.order[p - 1] & 1)
            m0next()

        a(f'K2_V{tag}:')
        if ball:
            a('s_waitcnt lgkmcnt(0)')
            for j in range(1, 6):
                coefread(j, 1)
        for i in range(8):
            a(f'v_mov_b32 v{PA+2*(U-4)+i}, v{PI+i}')
        a('s_waitcnt lgkmcnt(0)')
        a(f'buffer_load_dwordx4 v{PI+6}, s[{SRD_X}:{SRD_X+3}], s{S_SOFF} offen{c.gpol} lds')
        a(f'buffer_load_dwordx4 v{PI+7}, s[{SRD_X1}:{SRD_X1+3}], s{S_SOFF} offen offset:1024{c.gpol} lds')
        a(f's_add_u32 m0, s{S_RB}, {dest(*target(0, 0))}')
        for _ in range(c.shift): a('s_nop 0')
        for p in range(8):
            a(f'; ---------------- version {tag} phase {p}')
            for u in range(U):
                unit(p, u)
            a('s_waitcnt lgkmcnt(0)')
            back(U - 1)
        if tag != 'G':
            a('s_branch K2_TAIL')
        names = list(stp.names)
        stp.names = names0
        return names

    version('5', 5, False)
    version('6', 6, False)
    stp.names = version('G', 6, True)
    a('K2_TAIL:')
    stp.issue()
    if c.stamp: a('s_memtime s[84:85]')
    a('s_nop 7\ns_nop 3')
    if c.stamp:
        a('s_waitcnt lgkmcnt(0)')
    stp.save('tail')
    fwrite(7)
    for op in ('add',):
        a(f'v_{op}_u32 v{V_FRA}, s{S_FT}, v{V_FRA}')
        a(f'v_{op}_u32 v{V_FRB}, s{S_FT}, v{V_FRB}')
    a('s_waitcnt vmcnt(0) lgkmcnt(0)')
    a('s_barrier')
    plan = g2_plan(7, c)
    regs = [COEF + 4 * i for i in range(12)] + [AGG + 4 * i for i in range(8)] + [SET[0] + 4 * i for i in range(4)]
    mm = [t for t in plan if t[0] == 'mm']
    fl = ([i for i, t in enumerate(plan) if t[0] == 'flip'] + [1000])[0]
    def rd(n): a(f'ds_read_b128 v[{regs[n]}:{regs[n]+3}], v{mm[n][1]} offset:{mm[n][2]}')
    for n in range(12): rd(n)
    for n in range(24):
        if n == fl - 6:
            flip(1)
        a(f's_waitcnt lgkmcnt({11 if n < 12 else 23 - n})')
        t = mm[n]
        a(f'v_mfma_f32_16x16x32_bf16 v[{t[4]}:{t[4]+3}], v[{t[3]}:{t[3]+3}], v[{regs[n]}:{regs[n]+3}], v[{t[4]}:{t[4]+3}]')
        if n < 12: rd(12 + n)
    a(f'v_subrev_u32 v{V_FRA}, s{S_FT}, v{V_FRA}')
    a(f'v_subrev_u32 v{V_FRB}, s{S_FT}, v{V_FRB}')
    a(f's_cmp_eq_u32 s{S_MODE}, 0\ns_cbranch_scc1 K2_EPI')
    a(f's_cmp_lg_u32 s{S_MORE}, 0\ns_cbranch_scc0 K2_NEXTC')
    a(f's_add_u32 s{S_J0}, s{S_J0}, 20')
    a('s_branch K2_RELOAD')
    a('K2_NEXTC:')
    a(f's_mov_b32 s{S_J0}, 0')
    a(f's_add_u32 s{S_C0}, s{S_C0}, s{S_CN}')
    a(f's_cmp_ge_u32 s{S_C0}, {NCH}\ns_cbranch_scc1 K2_EPI')
    a('s_branch K2_RELOAD')
    a('K2_FALLBACK:')
    a(f's_mov_b32 s{S_MODE}, 1\ns_mov_b32 s{S_CN}, 9\ns_mov_b32 s{S_C0}, 0\ns_mov_b32 s{S_J0}, 0')
    a('K2_RELOAD:')
    a('s_waitcnt vmcnt(0) lgkmcnt(0)')
    a('s_barrier')
    a('v_lshrrev_b32 v61, 1, v0')
    a(f'v_add_u32 v61, s{S_C0}, v61')
    a('v_min_u32 v61, 255, v61')
    a('v_lshlrev_b32 v62, 10, v61')
    a(f'buffer_load_dword v63, v62, s[{SRD_WS}:{SRD_WS+3}], s{S_TG} offen')
    a('s_waitcnt vmcnt(0)')
    a('s_branch K2_ROUND')
    a('K2_EPI:')
    stp.full('epi')
    a('s_nop 7')
    a(f'v_and_b32 v12, 15, v{l}\nv_lshrrev_b32 v13, 4, v{l}')
    a('v_mul_u32_u24 v12, 1040, v12')
    a('v_lshl_add_u32 v12, v13, 3, v12')
    a(f's_lshl_b32 s37, s{S_W}, 5')
    a('v_add_u32 v12, s37, v12')
    a(f's_mul_i32 s37, s{S_W}, {5*1040}')
    a(f'v_add_u32 v13, s37, v{V_L16}')
    a('s_mov_b32 s45, 0xbfb8aa3b')
    for nt in range(3):
        g = 20 + 4 * nt
        for r in range(4):
            a(f'v_mul_f32 v{g+r}, s45, v{OUT + nt*4 + r}')
        for r in range(4):
            a(f'v_exp_f32 v{g+r}, v{g+r}')
        a('s_nop 0')
        for r in range(4):
            a(f'v_add_f32 v{g+r}, 1.0, v{g+r}')
        for r in range(4):
            a(f'v_rcp_f32 v{g+r}, v{g+r}')
    a('s_nop 0')
    tmp = 32
    for nt in range(3):
        g = 20 + 4 * nt
        for o in range(4):
            q = OUT + (o * 3 + nt) * 4
            if o:
                for r in range(4):
                    a(f'v_mul_f32 v{q+r}, v{q+r}, v{g+r}')
            a(f'v_cvt_pk_bf16_f32 v{tmp}, v{q}, v{q+1}')
            a(f'v_cvt_pk_bf16_f32 v{tmp+1}, v{q+2}, v{q+3}')
            a(f'ds_write_b64 v12, v[{tmp}:{tmp+1}] offset:{nt*16640 + o*256}')
            tmp += 2
    a('s_waitcnt lgkmcnt(0)')
    a('s_barrier')
    for q in range(5):
        a(f'ds_read_b128 v[{64+4*q}:{67+4*q}], v13 offset:{1040*q}')
    for q in range(5):
        a(f's_waitcnt lgkmcnt({4-q})')
        if NB != 250:
            a(f's_bitcmp1_b32 s{S_VAL}, {q}\ns_cbranch_scc0 K2_NOST{q}')
        a(f'buffer_store_dwordx4 v[{64+4*q}:{67+4*q}], v{V_L16}, s[{SRD_OUT}:{SRD_OUT+3}], s{S_NODE+q} offen {c.osc}')
        if NB != 250:
            a(f'K2_NOST{q}:')
    stp.full('st_issued')
    if c.stamp:
        a('s_waitcnt vmcnt(0)')
        stp.full('end')
        a(f's_mov_b32 s{stp.base+len(stp.names)}, s{S_N}')
        stp.names.append('N')
        a(f's_mov_b32 s{stp.base+len(stp.names)}, s{S_MODE}')
        stp.names.append('mode')
        a(f's_sub_u32 s{stp.base+len(stp.names)}, s84, s82')
        stp.names.append('cyc')
        a(f's_sub_u32 s{stp.base+len(stp.names)}, s82, s86')
        stp.names.append('cyc0')
        print('K2 stamps:', stp.names)
    if c.stepst >= 0:
        a(f's_add_u32 s96, s34, {WS_DBG}\ns_addc_u32 s97, s35, 0\ns_mov_b32 s98, {256*8*256}\ns_mov_b32 s99, 0x20000')
        a(f's_lshl_b32 s90, s2, 3\ns_add_u32 s90, s90, s{S_W}\ns_lshl_b32 s90, s90, 8')
        a(f'v_mov_b32 v2, s{S_N}\nv_writelane_b32 v248, s{S_N}, 63')
        a(f'v_lshlrev_b32 v3, 2, v{V_LANE}')
        a('buffer_store_dword v248, v3, s[96:99], s90 offen')
        a('s_waitcnt vmcnt(0)')
    stp.dump(34, WS_ST2, S_W, 8, 96)
    a('K2_END:')
    a('s_endpgm')


def dump_lds(a, c):
    n = (c.LDS + 8191) // 8192
    a('s_waitcnt lgkmcnt(0)\ns_barrier')
    a(f's_mul_i32 s36, s2, {n*8192}')
    a(f's_add_u32 s30, s34, {WS_DBG}\ns_addc_u32 s31, s35, 0')
    srd(a, 80, 30, 250 * n * 8192)
    a('v_lshlrev_b32 v60, 4, v0')
    for k in range(n):
        a(f'v_add_u32 v61, {k*8192}, v60')
        if (k + 1) * 8192 > c.LDS:
            a(f'v_min_u32 v61, {c.LDS-16}, v61')
        a('ds_read_b128 v[64:67], v61')
        a('s_waitcnt lgkmcnt(0)')
        a('buffer_store_dwordx4 v[64:67], v60, s[80:83], s36 offen')
        a('s_add_u32 s36, s36, 8192')
        a('s_nop 1')
    a('s_waitcnt vmcnt(0)')
    a('K2_END:')
    a('s_endpgm')


def build(**kw):
    c = Cfg(**kw)
    a = Asm()
    hdr = header()
    hdr.append(f'; @launch kernel={K1} grid=({gen3_k1.K1_GRID},1,1) block=(320,1,1) lds={gen3_k1.K1_LDS}')
    hdr.append(f'; @launch kernel={K2} grid=({c.nbin},1,1) block=(512,1,1) lds={c.LDS}')
    a.L += hdr
    a.L.append('.amdgcn_target "amdgcn-amd-amdhsa--gfx950"')
    a.L.append('.text')
    gen_k2(a, c)
    gen3_k1.gen_k1(a, stamp=c.stamp, sc=c.k1sc, pf=c.k1pf, nbin=c.nbin)
    a.L.append('.section .rodata,"a"')
    a.L.append('.p2align 6')
    txt = a.text() + descriptor(K2, 256, 102) + '.p2align 6\n' + descriptor(K1, 72 + (4 if c.k1pf else 0), 102 if c.stamp else 64)
    return txt, c


if __name__ == '__main__':
    kw = eval('dict(' + (sys.argv[2] if len(sys.argv) > 2 else '') + ')')
    txt, c = build(**kw)
    out = sys.argv[1]
    open(out, 'w').write(txt)
    print('written', out, 'LDS', c.LDS, 'lines', txt.count('\n'))
```
